```python
import torch

def _softmax(x, axis=-1):
    return torch.softmax(x, dim=axis)

def _gelu(x):
    return torch.nn.functional.gelu(x, approximate='tanh')

def _silu(x):
    return torch.nn.functional.silu(x)

def _sigmoid(x):
    return torch.sigmoid(x)

def _layernorm(x, axis=-1, eps=1e-05):
    m = x.mean(dim=axis, keepdim=True)
    v = x.var(dim=axis, keepdim=True, unbiased=False)
    return (x - m) / torch.sqrt(v + eps)

def _scatter_add(tgt, idx, src, axis=0):
    return tgt.clone().index_add_(axis, idx, src)

def _segment_sum(src, seg, n):
    out = torch.zeros((n,) + src.shape[1:], dtype=src.dtype)
    return out.index_add_(0, seg, src)

def _pad(x, pw):
    flat = tuple((v for pair in reversed(pw) for v in pair))
    return torch.nn.functional.pad(x, flat)
kernel_name = 'gated_mix__sliding_local_dilated__mixer_gmlp__prompt'

def setup_inputs():

    _w = lambda a: (lambda t: t.to(torch.bfloat16) if t.is_floating_point() else t)(torch.as_tensor(a))

    def _A_setup():
        B, S, D = (1, 2048, 512)
        return {'x': _w((lambda *s: torch.randn(*s, dtype=torch.bfloat16) * 0.05)(B, S, D)), 'wqkv': _w((lambda *s: torch.randn(*s, dtype=torch.bfloat16) * 0.8)(D, 3 * D)), 'wo': _w((lambda *s: torch.randn(*s, dtype=torch.bfloat16) * 0.05)(D, D))}
    _A_in = _A_setup()

    def _B_setup():
        B, S, D, F = (1, 2048, 512, 1792)
        Fh = F // 2
        return {'x': _w((lambda *s: torch.randn(*s, dtype=torch.bfloat16) * 0.05)(B, S, D)), 'w_in': _w((lambda *s: torch.randn(*s, dtype=torch.bfloat16) * 0.4)(D, 2 * Fh)), 'w_sp': _w(0.01 * (lambda *s: torch.randn(*s, dtype=torch.bfloat16) * 0.4)(S, S)), 'b_sp': _w(1.0 + 0.01 * (lambda *s: torch.randn(*s, dtype=torch.bfloat16) * 0.1)(S)), 'w_out': _w((lambda *s: torch.randn(*s, dtype=torch.bfloat16) * 0.1)(Fh, D))}
    _B_in = _B_setup()
    return {'A_x': _A_in['x'], 'A_wqkv': _A_in['wqkv'], 'A_wo': _A_in['wo'], 'B_x': _B_in['x'], 'B_w_in': _B_in['w_in'], 'B_w_sp': _B_in['w_sp'], 'B_b_sp': _B_in['b_sp'], 'B_w_out': _B_in['w_out'], 'gate_w': _w((lambda *s: torch.randn(*s, dtype=torch.bfloat16) * 0.05)(512) * 16.0)}

def reference(A_x, A_wqkv, A_wo, B_x, B_w_in, B_w_sp, B_b_sp, B_w_out, gate_w):

    def _A_ref(x, wqkv, wo):
        B, S, D = x.shape
        H = 32
        Dh = D // H
        W, dil = (8, 2)
        qkv = (lambda x, *d: x.permute(*d))((x @ wqkv).reshape(B, S, 3, H, Dh), 2, 0, 3, 1, 4)
        q, k, v = (qkv[0], qkv[1], qkv[2])
        scale = Dh ** (-0.5)
        pos = torch.arange(S)
        off = torch.arange(W) * dil
        idx = pos[:, None] - off[None, :]
        mask = idx >= 0
        idx_c = torch.where(mask, idx, 0).reshape(-1)
        kg = k[:, :, idx_c, :].reshape(B, H, S, W, Dh)
        vg = v[:, :, idx_c, :].reshape(B, H, S, W, Dh)
        logits = torch.einsum('bhsd,bhswd->bhsw', q, kg) * scale
        logits = torch.where(mask[None, None, :, :], logits, -1000000000.0)
        attn = _softmax(logits, axis=-1)
        o = torch.einsum('bhsw,bhswd->bhsd', attn, vg)
        return (lambda x, *d: x.permute(*d))(o, 0, 2, 1, 3).reshape(B, S, D) @ wo

    def _B_ref(x, w_in, w_sp, b_sp, w_out):
        B, S, D = x.shape
        F = w_in.shape[-1]
        Fh = F // 2
        z = _gelu(torch.einsum('bsd,df->bsf', x, w_in))
        z1 = z[..., :Fh].clone()
        z2 = _layernorm(z[..., Fh:], axis=-1)
        g = torch.einsum('ts,bsf->btf', w_sp, z2) + b_sp[None, :, None]
        return torch.einsum('bsf,fd->bsd', z1 * g, w_out)
    x = A_x
    g = _sigmoid((x * gate_w).sum(-1, keepdims=True))
    a = _A_ref(x, A_wqkv, A_wo)
    b = _B_ref(x, B_w_in, B_w_sp, B_b_sp, B_w_out)
    return g * a + (1 - g) * b
```

```python
import re

class Asm:
    def __init__(self):
        self.lines = []
        self.lab = 0
    def e(self, s): self.lines.append("    " + s)
    def __call__(self, s):
        for l in s.strip("\n").split("\n"):
            l = l.strip()
            if not l: continue
            if re.match(r"^[A-Za-z_.][\w.]*:$", l): self.lines.append(l)
            else: self.e(l)
    def label(self, name): self.lines.append(name + ":")
    def newlabel(self, p="L"):
        self.lab += 1; return f"{p}_{self.lab}"
    def raw(self, s): self.lines.append(s)
    def text(self, pad=True):
        lines = pad_hazards(self.lines) if pad else self.lines
        return "\n".join(lines) + "\n"

def kernel_begin(a, name):
    a.raw(".text"); a.raw(f".globl {name}"); a.raw(".p2align 8"); a.raw(f".type {name},@function"); a.label(name)

def kernel_desc(name, vgpr, sgpr=102, accum=None, wgy=False):
    if accum is None: accum = (vgpr + 3)//4*4
    s = f""".section .rodata,"a"
.p2align 6
.amdhsa_kernel {name}
  .amdhsa_next_free_vgpr {vgpr}
  .amdhsa_next_free_sgpr {sgpr}
  .amdhsa_accum_offset {accum}
  .amdhsa_group_segment_fixed_size 0
  .amdhsa_kernarg_size 96
  .amdhsa_user_sgpr_count 2
  .amdhsa_user_sgpr_kernarg_segment_ptr 1
  .amdhsa_system_sgpr_workgroup_id_x 1
"""
    if wgy: s += "  .amdhsa_system_sgpr_workgroup_id_y 1\n"
    s += ".end_amdhsa_kernel\n"
    return s

def regs_of(op):
    op = op.strip()
    op = op.lstrip("-")
    m = re.match(r"^abs\((.*)\)$", op)
    if m: op = m.group(1)
    op = op.strip("|")
    m = re.match(r"^([vsa])(\d+)$", op)
    if m: return [m.group(1) + m.group(2)]
    m = re.match(r"^([vsa])\[(\d+):(\d+)\]$", op)
    if m: return [m.group(1) + str(i) for i in range(int(m.group(2)), int(m.group(3)) + 1)]
    if op in ("vcc", "vcc_lo", "vcc_hi"): return ["vcc"]
    if op in ("exec", "exec_lo", "exec_hi"): return ["exec"]
    if op == "m0": return ["m0"]
    return []

TRANS = ("v_exp_", "v_log_", "v_rcp_", "v_rsq_", "v_sqrt_", "v_sin_", "v_cos_")

class Ins:
    def __init__(self, line):
        self.line = line
        s = line.split(";")[0].strip()
        self.mn = s.split()[0]
        rest = s[len(self.mn):].strip()
        ops = []; cur = ""; depth = 0
        for ch in rest:
            if ch in "[(": depth += 1
            if ch in "])": depth -= 1
            if ch == "," and depth == 0: ops.append(cur.strip()); cur = ""
            else: cur += ch
        if cur.strip(): ops.append(cur.strip())
        self.mods = ""
        if ops:
            last = ops[-1].split(None, 1)
            ops[-1] = last[0]
            if len(last) > 1: self.mods = last[1]
        self.ops = ops
        mn = self.mn
        self.mfma = mn.startswith("v_mfma")
        self.valu = mn.startswith("v_") and not self.mfma
        self.vmem = mn.startswith("buffer_") or mn.startswith("global_")
        self.ds = mn.startswith("ds_")
        self.salu = mn.startswith("s_")
        self.trans = mn.startswith(TRANS)
        self.dpp = "_dpp" in mn
        self.sdwa = "_sdwa" in mn
        self.perm = mn.startswith("v_permlane")
        self.rdlane = mn.startswith("v_readfirstlane") or mn.startswith("v_readlane")
        self.dot = mn.startswith("v_dot")
        self.lds_dma = self.vmem and (" lds" in (" " + self.mods) or "_lds_" in mn)
        self.ws = 1
        if mn == "s_nop": self.ws = int(ops[0], 0) + 1
        R = [regs_of(o) for o in ops]
        self.w = set(); self.r = set(); self.stdata = set(); self.srcC = []; self.srcAB = set(); self.D = []
        if self.mfma:
            self.D = R[0]; self.w = set(R[0]); self.srcAB = set(R[1]) | set(R[2]); self.srcC = R[3]
            self.r = self.srcAB | set(self.srcC)
            self.passes = 8 if "32x32" in mn else 4
        elif self.valu:
            if mn.startswith("v_cmp"):
                self.w = set(R[0]); [self.r.update(x) for x in R[1:]]
                if mn.startswith("v_cmpx"): self.w.add("exec")
            elif self.perm or mn.startswith("v_swap"):
                self.w = set(R[0]) | set(R[1]); self.r = set(self.w)
            elif "_co_" in mn and not mn.startswith("v_mad"):
                self.w = set(R[0]) | set(R[1]); [self.r.update(x) for x in R[2:]]
            else:
                self.w = set(R[0]); [self.r.update(x) for x in R[1:]]
                if mn.startswith(("v_fmac", "v_dot2c", "v_pk_fmac", "v_writelane")) or self.dpp: self.r |= set(R[0])
        elif self.vmem:
            if mn in ("buffer_inv", "buffer_wbl2"): pass
            elif self.lds_dma:
                [self.r.update(x) for x in R]; self.r.add("m0")
            elif "_load_" in mn:
                self.w = set(R[0]); [self.r.update(x) for x in R[1:]]
            elif mn.startswith("buffer_store") or mn.startswith("buffer_atomic"):
                [self.r.update(x) for x in R]
                if len(R[0]) >= 3: self.stdata = set(R[0])
                if "atomic" in mn and "sc0" in self.mods: self.w = set(R[0])
            elif mn.startswith("global_store"):
                [self.r.update(x) for x in R]
                if len(R[1]) >= 3: self.stdata = set(R[1])
            elif mn.startswith("global_atomic"):
                if "sc0" in self.mods:
                    self.w = set(R[0]); [self.r.update(x) for x in R[1:]]
                    if len(R[2]) >= 3: self.stdata = set(R[2])
                else:
                    [self.r.update(x) for x in R]
                    if len(R[1]) >= 3: self.stdata = set(R[1])
        elif self.ds:
            if mn.startswith(("ds_read", "ds_bpermute", "ds_permute", "ds_swizzle")) or "_rtn" in mn:
                self.w = set(R[0]); [self.r.update(x) for x in R[1:]]
            else:
                [self.r.update(x) for x in R]
        elif self.salu:
            if mn.startswith(("s_cmp", "s_cbranch", "s_branch", "s_waitcnt", "s_barrier", "s_nop", "s_endpgm", "s_setprio", "s_sleep", "s_bitcmp")):
                [self.r.update(x) for x in R]
            else:
                if R: self.w = set(R[0]); [self.r.update(x) for x in R[1:]]
                if "saveexec" in mn: self.w.add("exec")

def isv(r): return r[0] in "va" and r not in ("vcc",)
def iss(r): return (r[0] == "s") or r == "vcc"

def need(p, c):
    n = 0
    pw_v = {r for r in p.w if isv(r)}; pw_s = {r for r in p.w if iss(r)}
    if p.stdata and (p.stdata & c.w): n = max(n, 2 if (c.valu or c.mfma) else 1)
    if p.valu:
        if pw_s & c.r:
            if c.vmem: n = max(n, 5)
            if c.valu: n = max(n, 4 if (c.mn.startswith(("v_readlane", "v_writelane"))) else 2)
            if c.salu: n = max(n, 1)
        if pw_v & c.r:
            if c.dpp: n = max(n, 2)
            if c.perm: n = max(n, 2)
            if c.rdlane: n = max(n, 1)
            if c.mfma: n = max(n, 2)
            if p.trans and (c.valu or c.mfma) and not c.trans: n = max(n, 1)
            if p.sdwa and c.valu: n = max(n, 1)
        if p.dot and (pw_v & (c.r | c.w)):
            if not (c.mn == p.mn and c.mn.startswith("v_dot2c") and not (pw_v & (c.r - set(regs_of(c.ops[0]))))): n = max(n, 3)
        if "exec" in p.w:
            if c.dpp: n = max(n, 5)
            if c.perm or c.rdlane or c.mfma: n = max(n, 4)
    if p.salu and "m0" in p.w and c.lds_dma: n = max(n, 1)
    if p.mfma:
        D = set(p.D)
        big = 12 if p.passes == 8 else 8
        if c.mfma:
            if D & c.srcAB: n = max(n, big)
            if D & set(c.srcC):
                if not (c.srcC == p.D and c.passes == p.passes and c.mn == p.mn): n = max(n, big - 2)
            elif D & set(c.D): n = max(n, big)
        elif (c.valu or c.vmem or c.ds) and (D & (c.r | c.w)): n = max(n, big)
        if (c.valu) and (set(p.srcC) & c.w): n = max(n, 7 if p.passes == 8 else 3)
    return n

def is_ins(l):
    s = l.split(";")[0].strip()
    return bool(s) and l.startswith("    ") and not s.startswith(".") and not s.endswith(":")

def pad_hazards(lines, window=14):
    out = []; hist = []
    for l in lines:
        if not is_ins(l):
            out.append(l)
            if l.startswith(".text") or l.startswith(".section"): hist = []
            continue
        c = Ins(l)
        dist = 0; req = 0
        for p in reversed(hist):
            n = need(p, c)
            if n - dist > req: req = n - dist
            dist += p.ws
            if dist >= window: break
        if req > 0:
            nop = f"    s_nop {req-1}"
            out.append(nop); hist.append(Ins(nop))
        out.append(l); hist.append(c)
        if c.mn in ("s_endpgm", "s_branch", "s_setpc_b64"): hist = []
        hist = hist[-window:]
    check_branches(out, window)
    return out

def check_branches(lines, window):
    labels = {}
    for i, l in enumerate(lines):
        m = re.match(r"^([A-Za-z_.][\w.]*):$", l)
        if m: labels[m.group(1)] = i
    for i, l in enumerate(lines):
        if not is_ins(l): continue
        c = Ins(l)
        if c.mn.startswith("s_cbranch") or c.mn == "s_branch":
            tgt = labels[c.ops[0]]
            before = []
            j = i
            while j >= 0 and len(before) < window:
                if is_ins(lines[j]):
                    x = Ins(lines[j])
                    if j != i and x.mn in ("s_endpgm", "s_branch"): break
                    before.append(x)
                j -= 1
            after = []
            j = tgt
            while j < len(lines) and len(after) < window:
                if is_ins(lines[j]):
                    x = Ins(lines[j]); after.append(x)
                    if x.mn in ("s_endpgm", "s_branch"): break
                j += 1
            da = 0
            for cc in after:
                d = da
                for p in before:
                    if need(p, cc) > d:
                        raise RuntimeError(f"hazard across branch '{l.strip()}': {p.line.strip()} -> {cc.line.strip()} need {need(p,cc)} have {d}")
                    d += p.ws
                da += cc.ws
```

```python
import sys, struct
from asmlib import *

def f2u(x): return struct.unpack("<I", struct.pack("<f", x))[0]
def hx(x): return "0x%08x" % (x & 0xffffffff)

Z2N = 0x0000000
Z1  = 0x0380000
OB  = 0x0700000
HB  = 0x0900000
GATE= 0x1000000
MBOX= 0x1010000
STMP= 0x1060000
WS_SIZE = 0x1200000
LOG2E = 1.4426950408889634
GC1 = -2.0 * LOG2E * 0.7978845608028654
GC2 = GC1 * 0.044715

STAMPS = False

def srd(a, d, b, size):
    a(f"s_mov_b32 s{d}, s{b}\ns_and_b32 s{d+1}, s{b+1}, 0xffff\ns_mov_b32 s{d+2}, {hx(size)}\ns_mov_b32 s{d+3}, 0x20000")

def vr(b, n): return f"v[{b}:{b+n-1}]"

def stamp(a, k, slot, wsrd, wave_s):
    if not STAMPS: return
    a(f"""
    s_memrealtime s[90:91]
    s_lshl_b32 s92, s2, 4
    s_add_u32 s92, s92, s{wave_s}
    s_lshl_b32 s92, s92, 6
    s_add_u32 s92, s92, {STMP + k*256*16*64 + slot*8}
    s_waitcnt lgkmcnt(0)
    s_mov_b64 s[94:95], exec
    s_mov_b64 exec, 1
    v_mov_b32 v{STV}, s90
    v_mov_b32 v{STV+1}, s91
    buffer_store_dwordx2 v[{STV}:{STV+1}], off, s[{wsrd}:{wsrd+3}], s92
    s_mov_b64 exec, s[94:95]
    """)
STV = 166

def gelu_pairs(a, regs, tmp, c):
    pass

def loader_loop(a, name, S, R, n, issue, tail_extra=None, extra_n=0, cnt="s30"):
    L, T = name + "_ld", name + "_tail"
    a(f"s_mov_b32 {cnt}, 0")
    a.label(L)
    issue()
    a(f"s_add_u32 {cnt}, {cnt}, 1\ns_cmp_lt_u32 {cnt}, {R}\ns_cbranch_scc1 {L}")
    a(f"s_cmp_lg_u32 {cnt}, {R}\ns_cbranch_scc1 {L}_b")
    a(f"s_waitcnt vmcnt({n*(R-1)})\ns_barrier")
    a.label(L + "_b")
    a(f"s_cmp_ge_u32 {cnt}, {S}\ns_cbranch_scc1 {T}")
    a(f"s_waitcnt vmcnt({n*(R-2)})\ns_barrier\ns_branch {L}")
    a.label(T)
    if tail_extra: tail_extra()
    for s in range(S - R + 1, S):
        a(f"s_waitcnt vmcnt({n*(S-1-s) + extra_n})\ns_barrier")

def rowtile_voff(a, dst, lw_s, stride_log, t1, t2):
    a(f"""
    s_and_b32 s24, s{lw_s}, 1
    s_lshr_b32 s25, s{lw_s}, 1
    s_lshl_b32 s26, s24, 4
    s_add_u32 s26, s26, s25
    v_lshrrev_b32 v{t1}, 3, v1
    v_lshlrev_b32 v{t1}, 1, v{t1}
    v_add_u32 v{t1}, s26, v{t1}
    v_lshlrev_b32 v{t1}, {stride_log}, v{t1}
    s_lshl_b32 s24, s24, 2
    v_lshrrev_b32 v{t2}, 4, v1
    v_add_u32 v{t2}, s24, v{t2}
    v_and_b32 v{dst}, 7, v1
    v_xor_b32 v{dst}, v{dst}, v{t2}
    v_lshl_add_u32 v{dst}, v{dst}, 4, v{t1}
    """)

def rowtile_raddr(a, dst0, dst1, t1):
    a(f"""
    v_lshrrev_b32 v{t1}, 1, v2
    v_xor_b32 v{t1}, v{t1}, v3
    v_lshlrev_b32 v{t1}, 4, v{t1}
    v_lshl_add_u32 v{dst0}, v2, 7, v{t1}
    v_xor_b32 v{dst1}, 64, v{dst0}
    """)

def interleave(a, mf, rd, per=None):
    mf = list(mf); rd = list(rd)
    n = len(mf)
    k = 0
    lim = max(1, n - 3)
    for idx, m in enumerate(mf):
        a(m)
        want = min(len(rd), -(-len(rd) * (idx + 1) // lim))
        while k < want:
            a(rd[k]); k += 1
    while k < len(rd):
        a(rd[k]); k += 1

def common_entry(a, nwg):
    a(f"""
    s_cmp_ge_u32 s2, {nwg}
    s_cbranch_scc1 {a.kname}_end
    v_lshrrev_b32 v4, 6, v0
    v_and_b32 v1, 63, v0
    v_and_b32 v2, 15, v0
    v_readfirstlane_b32 s20, v4
    v_lshrrev_b32 v3, 4, v1
    """)

A_XB = 20480; A_ST = 45056; A_R = 3
M_XB = 16384; M_ST = 32768; M_R = 4
K1_LDS = A_ST * A_R
NONCE_LDS = M_ST * M_R

def gen_k1(a):
    K = "k1_kernel"
    a.kname = K
    kernel_begin(a, K)
    a("s_load_dwordx4 s[40:43], s[0:1], 0\ns_load_dwordx2 s[44:45], s[0:1], 32\ns_load_dwordx4 s[48:51], s[0:1], 80")
    common_entry(a, 256)
    a("""
    s_and_b32 s24, s2, 7
    s_lshr_b32 s25, s2, 3
    s_lshr_b32 s21, s24, 1
    s_lshl_b32 s21, s21, 2
    s_and_b32 s26, s25, 3
    s_add_u32 s21, s21, s26
    s_lshr_b32 s27, s25, 2
    s_and_b32 s22, s24, 1
    s_lshl_b32 s22, s22, 2
    s_and_b32 s28, s27, 3
    s_add_u32 s22, s22, s28
    s_lshl_b32 s23, s26, 1
    s_add_u32 s23, s23, s27
    s_and_b32 s23, s23, 7
    s_waitcnt lgkmcnt(0)
    """)
    srd(a, 4, 40, 2048*1024)
    srd(a, 12, 50, WS_SIZE)
    stamp(a, 0, 0, 12, 20)
    a(f"s_cmp_ge_u32 s27, 4\ns_cbranch_scc1 k1_attn")
    srd(a, 8, 44, 512*3584)
    a("s_cmp_ge_u32 s20, 8\ns_cbranch_scc1 k1_mload")
    XA0, XA1, WA = 5, 6, 8
    CX0, CX1, CW = 12, 13, 14
    ACC = 20
    FX = 76; FY = 112
    a("s_and_b32 s29, s20, 3")
    rowtile_raddr(a, XA0, XA1, 7)
    a(f"""
    s_lshl_b32 s24, s29, 12
    v_add_u32 v{XA0}, s24, v{XA0}
    v_add_u32 v{XA1}, s24, v{XA1}
    v_lshrrev_b32 v7, 2, v2
    v_lshl_add_u32 v18, v3, 3, v7
    v_lshlrev_b32 v18, 7, v18
    v_and_b32 v19, 3, v2
    v_lshl_add_u32 v18, v19, 3, v18
    v_add_u32 v18, {M_XB}, v18
    v_lshrrev_b32 v7, 3, v2
    v_and_b32 v19, 1, v3
    v_lshl_or_b32 v7, v19, 1, v7
    v_lshl_add_u32 v{WA}, v7, 5, v18
    v_xor_b32 v{WA+1}, 32, v{WA}
    v_xor_b32 v{WA+2}, 64, v{WA}
    v_xor_b32 v{WA+3}, 0x60, v{WA}
    """)
    for r in range(56): a(f"v_mov_b32 v{ACC+r}, 0")
    def m_reads(F, kk):
        out = []
        cx = CX0 if kk == 0 else CX1
        for p in range(2): out.append(f"ds_read_b128 {vr(F+4*p,4)}, v{cx} offset:{p*2048}")
        for n in range(7):
            for h in range(2):
                out.append(f"ds_read_b64_tr_b16 {vr(F+8+4*n+2*h,2)}, v{CW+(n&3)} offset:{(n>>2)*8192 + kk*4096 + h*512}")
        return out
    def m_mfma(F, swap):
        out = []
        for n in range(7):
            for p in range(2):
                d = vr(ACC + (p*7+n)*4, 4); x = vr(F+4*p, 4); w = vr(F+8+4*n, 4)
                out.append(f"v_mfma_f32_16x16x32_bf16 {d}, {w if swap else x}, {x if swap else w}, {d}")
        return out
    def m_setaddr():
        return [f"v_add_u32 v{CX0}, s31, v{XA0}", f"v_add_u32 v{CX1}, s31, v{XA1}"] + [f"v_add_u32 v{CW+q}, s31, v{WA+q}" for q in range(4)]
    def m_loop(name, swap, last_barrier):
        for x in m_setaddr(): a(x)
        for x in m_reads(FX, 0): a(x)
        a("s_mov_b32 s30, 0\ns_waitcnt lgkmcnt(0)")
        a.label(name)
        interleave(a, m_mfma(FX, swap), m_reads(FY, 1))
        a(f"s_add_u32 s31, s31, {M_ST}\ns_and_b32 s31, s31, {M_ST*M_R-1}\ns_add_u32 s30, s30, 1\ns_cmp_eq_u32 s30, 8\ns_waitcnt lgkmcnt(0)")
        if not last_barrier: a(f"s_cbranch_scc1 {name}_nb")
        a("s_barrier")
        if not last_barrier: a.label(name + "_nb")
        for x in m_setaddr(): a(x)
        interleave(a, m_mfma(FY, swap), m_reads(FX, 0))
        a(f"s_waitcnt lgkmcnt(0)\ns_cbranch_scc0 {name}")
    a("s_mov_b32 s31, 0\ns_cmp_ge_u32 s20, 4\ns_cbranch_scc1 k1_z1")
    a("s_setprio 2\ns_barrier")
    m_loop("k1_z2loop", False, True)
    stamp(a, 0, 1, 12, 20)
    a(f"s_mov_b32 s32, {hx(f2u(GC2))}\ns_mov_b32 s33, {hx(f2u(GC2))}\nv_mov_b32 v18, {hx(f2u(GC1))}\nv_mov_b32 v19, {hx(f2u(GC1))}")
    T = FX
    SUM = 148; SQ = 156
    def gelu_tile_pair(n):
        prs = [ACC + (p*7+n)*4 + 2*q for p in range(2) for q in range(2)]
        tm = [T + 2*k for k in range(4)]
        for x, t in zip(prs, tm): a(f"v_pk_mul_f32 {vr(t,2)}, {vr(x,2)}, {vr(x,2)}")
        for x, t in zip(prs, tm): a(f"v_pk_fma_f32 {vr(t,2)}, {vr(t,2)}, s[32:33], v[18:19]")
        for x, t in zip(prs, tm): a(f"v_pk_mul_f32 {vr(t,2)}, {vr(t,2)}, {vr(x,2)}")
        for t in tm: a(f"v_exp_f32 v{t}, v{t}\nv_exp_f32 v{t+1}, v{t+1}")
        for t in tm: a(f"v_pk_add_f32 {vr(t,2)}, {vr(t,2)}, 1.0 op_sel_hi:[1,0]")
        for t in tm: a(f"v_rcp_f32 v{t}, v{t}\nv_rcp_f32 v{t+1}, v{t+1}")
        for x, t in zip(prs, tm): a(f"v_pk_mul_f32 {vr(x,2)}, {vr(x,2)}, {vr(t,2)}")
        for k, x in enumerate(prs):
            if n == 0:
                a(f"v_pk_mul_f32 {vr(SQ+2*k,2)}, {vr(x,2)}, {vr(x,2)}")
            else:
                a(f"v_pk_fma_f32 {vr(SQ+2*k,2)}, {vr(x,2)}, {vr(x,2)}, {vr(SQ+2*k,2)}")
                if n == 1: a(f"v_pk_add_f32 {vr(SUM+2*k,2)}, {vr(x,2)}, {vr(x-4,2)}")
                else: a(f"v_pk_add_f32 {vr(SUM+2*k,2)}, {vr(x,2)}, {vr(SUM+2*k,2)}")
    for n in range(7): gelu_tile_pair(n)
    DP = "row_mask:0xf"
    for base in (SUM, SQ):
        for p in range(2):
            for r in range(2):
                lo, hi = base+p*4+r, base+p*4+r+2
                a(f"v_add_f32_dpp v{lo}, v{lo}, v{lo} row_ror:8 {DP} bank_mask:0x3")
                a(f"v_add_f32_dpp v{lo}, v{hi}, v{hi} row_ror:8 {DP} bank_mask:0xc")
    for base in (SUM, SQ):
        for p in range(2):
            lo, hi = base+p*4, base+p*4+1
            a(f"v_add_f32_dpp v{lo}, v{lo}, v{lo} row_shl:4 {DP} bank_mask:0x5")
            a(f"v_add_f32_dpp v{lo}, v{hi}, v{hi} row_shr:4 {DP} bank_mask:0xa")
    for qp in ("[1,0,3,2]", "[2,3,0,1]"):
        for base in (SUM, SQ):
            for p in range(2):
                lo = base+p*4
                a(f"v_add_f32_dpp v{lo}, v{lo}, v{lo} quad_perm:{qp} {DP} bank_mask:0xf")
    a(f"""
    v_mov_b32 v7, {NONCE_LDS}
    ds_read_b64 {vr(T+2,2)}, v7
    v_and_b32 v7, 1, v2
    v_cmp_eq_u32 vcc, 1, v7
    v_lshrrev_b32 v4, 2, v2
    v_lshl_add_u32 v4, v4, 1, v7
    v_lshl_add_u32 v4, v3, 3, v4
    v_lshlrev_b32 v4, 4, v4
    v_cndmask_b32 v{T}, v{SUM}, v{SUM+4}, vcc
    v_cndmask_b32 v{T+1}, v{SQ}, v{SQ+4}, vcc
    s_lshl_b32 s34, s21, 2
    s_add_u32 s34, s34, s29
    s_lshl_b32 s34, s34, 12
    s_add_u32 s34, s34, {MBOX}
    s_lshl_b32 s35, s22, 9
    s_add_u32 s35, s35, s34
    s_mov_b32 s36, 0x33333333
    s_mov_b32 s37, 0x33333333
    s_waitcnt lgkmcnt(0)
    s_mov_b64 exec, s[36:37]
    buffer_store_dwordx4 {vr(T,4)}, v4, s[12:15], s35 offen sc0 sc1
    s_mov_b64 exec, -1
    v_readfirstlane_b32 s38, v{T+2}
    v_readfirstlane_b32 s39, v{T+3}
    s_setprio 0
    """)
    stamp(a, 0, 2, 12, 20)
    for s in range(9, 16): a("s_barrier")
    a(f"""
    v_and_b32 v4, 7, v2
    v_lshl_add_u32 v4, v3, 3, v4
    v_lshlrev_b32 v4, 4, v4
    v_lshrrev_b32 v7, 3, v2
    v_lshl_add_u32 v4, v7, 9, v4
    """)
    a("s_mov_b32 s30, 0")
    a.label("k1_poll")
    P = T + 8
    for j in range(4): a(f"buffer_load_dwordx4 {vr(P+4*j,4)}, v4, s[12:15], s34 offen offset:{j*1024} sc0 sc1")
    a("s_waitcnt vmcnt(0)")
    a(f"v_xor_b32 v7, s38, v{P+2}\nv_xor_b32 v5, s39, v{P+3}\nv_or_b32 v7, v7, v5")
    for j in range(1, 4):
        a(f"v_xor_b32 v5, s38, v{P+4*j+2}\nv_xor_b32 v6, s39, v{P+4*j+3}\nv_or3_b32 v7, v7, v5, v6")
    a("v_cmp_ne_u32 vcc, 0, v7\ns_add_u32 s30, s30, 1\ns_cmp_gt_u32 s30, 0x40000\ns_cbranch_scc1 k1_pollx\ns_cbranch_vccnz k1_poll")
    a.label("k1_pollx")
    stamp(a, 0, 3, 12, 20)
    a(f"""
    v_pk_add_f32 {vr(P,2)}, {vr(P,2)}, {vr(P+4,2)}
    v_pk_add_f32 {vr(P+8,2)}, {vr(P+8,2)}, {vr(P+12,2)}
    v_pk_add_f32 {vr(P,2)}, {vr(P,2)}, {vr(P+8,2)}
    v_add_f32_dpp v{P}, v{P}, v{P} row_ror:8 {DP} bank_mask:0xf
    v_add_f32_dpp v{P+1}, v{P+1}, v{P+1} row_ror:8 {DP} bank_mask:0xf
    v_mul_f32 v{P}, {hx(f2u(1.0/896))}, v{P}
    v_mul_f32 v{P+1}, {hx(f2u(1.0/896))}, v{P+1}
    v_fma_f32 v{P+1}, -v{P}, v{P}, v{P+1}
    v_max_f32 v{P+1}, 0, v{P+1}
    v_add_f32 v{P+1}, {hx(f2u(1e-5))}, v{P+1}
    v_rsq_f32 v{P+1}, v{P+1}
    v_mul_f32 v{P}, v{P}, v{P+1}
    v_sub_f32 v{P}, 0, v{P}
    """)
    for p in range(2):
        for r in range(4):
            a(f"v_mov_b32_dpp v{SQ+p*4+r}, v{P+1} row_newbcast:{2*r+p} {DP} bank_mask:0xf")
            a(f"v_mov_b32_dpp v{SUM+p*4+r}, v{P} row_newbcast:{2*r+p} {DP} bank_mask:0xf")
    a(f"""
    s_lshl_b32 s34, s21, 2
    s_add_u32 s34, s34, s29
    s_mul_i32 s34, s34, 56
    s_mul_i32 s35, s22, 7
    s_add_u32 s34, s34, s35
    s_lshl_b32 s34, s34, 10
    s_add_u32 s34, s34, {Z2N}
    s_add_u32 s35, s34, 4096
    v_lshlrev_b32 v4, 4, v1
    """)
    for n in range(7):
        for p in range(2):
            for q in range(2):
                x = ACC + (p*7+n)*4 + 2*q
                a(f"v_pk_fma_f32 {vr(x,2)}, {vr(x,2)}, {vr(SQ+p*4+2*q,2)}, {vr(SUM+p*4+2*q,2)}")
        o = FY + 4*n
        for r in range(4): a(f"v_cvt_pk_bf16_f32 v{o+r}, v{ACC+n*4+r}, v{ACC+(7+n)*4+r}")
        a(f"buffer_store_dwordx4 {vr(o,4)}, v4, s[12:15], s{34 + (n>>2)} offen offset:{(n&3)*1024}")
    stamp(a, 0, 4, 12, 20)
    a("s_endpgm")
    a.label("k1_z1")
    a("s_cmp_lg_u32 s20, 4\ns_cbranch_scc1 k1_z1w")
    a(f"""
    s_memrealtime s[36:37]
    s_lshl_b32 s38, s21, 4
    v_mov_b32 v7, s38
    v_mov_b32 v{FX+2}, 0
    v_mov_b32 v{FX+3}, 0
    s_waitcnt lgkmcnt(0)
    s_or_b32 s36, s36, 1
    v_mov_b32 v{FX}, s36
    v_mov_b32 v{FX+1}, s37
    s_mov_b64 exec, 1
    global_atomic_cmpswap_x2 {vr(FX+4,2)}, v7, {vr(FX,4)}, s[48:49] sc0 sc1
    s_mov_b64 exec, -1
    """)
    for s in range(7): a("s_barrier")
    a(f"""
    s_waitcnt vmcnt(0)
    s_mov_b64 exec, 1
    v_cmp_eq_u32 vcc, 0, v{FX+4}
    v_mov_b32 v7, {NONCE_LDS}
    v_cndmask_b32 v{FX+4}, v{FX+4}, v{FX}, vcc
    v_cndmask_b32 v{FX+5}, v{FX+5}, v{FX+1}, vcc
    ds_write_b64 v7, {vr(FX+4,2)}
    s_mov_b64 exec, -1
    s_waitcnt lgkmcnt(0)
    s_barrier
    s_barrier
    s_branch k1_z1go
    """)
    a.label("k1_z1w")
    for s in range(9): a("s_barrier")
    a.label("k1_z1go")
    m_loop("k1_z1loop", True, False)
    stamp(a, 0, 1, 12, 20)
    a(f"""
    s_lshl_b32 s34, s21, 3
    s_lshl_b32 s35, s29, 1
    s_add_u32 s34, s34, s35
    s_mul_i32 s34, s34, 28
    s_mul_i32 s35, s22, 7
    s_lshr_b32 s35, s35, 1
    s_add_u32 s34, s34, s35
    s_lshl_b32 s34, s34, 10
    s_add_u32 s34, s34, {Z1}
    s_add_u32 s35, s34, {28*1024}
    v_lshlrev_b32 v4, 4, v1
    """)
    for p in range(2):
        for n in range(7):
            x = ACC + (p*7+n)*4; o = FX + p*16 + 2*n
            a(f"v_cvt_pk_bf16_f32 v{o}, v{x}, v{x+1}\nv_cvt_pk_bf16_f32 v{o+1}, v{x+2}, v{x+3}")
    a("s_bitcmp1_b32 s22, 0\ns_cbranch_scc1 k1_z1odd")
    for p in range(2):
        o = FX + p*16
        for m in range(3): a(f"buffer_store_dwordx4 {vr(o+4*m,4)}, v4, s[12:15], s{34+p} offen offset:{m*1024}")
        a(f"buffer_store_dwordx2 {vr(o+12,2)}, v4, s[12:15], s{34+p} offen offset:{3*1024}")
    stamp(a, 0, 4, 12, 20)
    a("s_endpgm")
    a.label("k1_z1odd")
    for p in range(2):
        o = FX + p*16
        a(f"buffer_store_dwordx2 {vr(o,2)}, v4, s[12:15], s{34+p} offen offset:8")
        for m in range(3): a(f"buffer_store_dwordx4 {vr(o+2+4*m,4)}, v4, s[12:15], s{34+p} offen offset:{(m+1)*1024}")
    stamp(a, 0, 4, 12, 20)
    a("s_endpgm")
    def w_voff(stride):
        a(f"""
        v_lshrrev_b32 v7, 3, v1
        s_lshl_b32 s24, s29, 3
        v_add_u32 v7, s24, v7
        s_movk_i32 s24, {stride}
        v_mul_lo_u32 v7, v7, s24
        v_bfe_u32 v6, v1, 4, 1
        s_and_b32 s24, s29, 1
        s_lshl_b32 s24, s24, 1
        v_or_b32 v6, s24, v6
        v_bfe_u32 v9, v1, 1, 2
        v_xor_b32 v6, v6, v9
        v_and_b32 v9, 1, v1
        v_lshl_or_b32 v9, v6, 1, v9
        v_lshl_add_u32 v9, v9, 4, v7
        """)
    a.label("k1_mload")
    a("s_sub_u32 s29, s20, 8")
    rowtile_voff(a, 8, 29, 10, 6, 7)
    w_voff(3584)
    a(f"""
    v_cmp_eq_u32 vcc, 3, v6
    v_bfrev_b32 v7, 1
    s_lshl_b32 s32, s21, 17
    s_mul_i32 s33, s22, 224
    s_lshl_b32 s34, s29, 10
    v_cndmask_b32 v10, v9, v7, vcc
    """)
    def m_issue():
        a(f"""
        s_add_u32 s35, s30, s23
        s_and_b32 s35, s35, 7
        s_lshl_b32 s36, s35, 7
        s_add_u32 s36, s36, s32
        s_mul_i32 s37, s35, {64*3584}
        s_add_u32 s37, s37, s33
        s_cmp_lt_u32 s30, 8
        s_cselect_b32 s38, 1792, 0
        s_add_u32 s37, s37, s38
        s_and_b32 s38, s30, {M_R-1}
        s_lshl_b32 s38, s38, 15
        s_add_u32 s38, s38, s34
        """)
        for b in range(4):
            a(f"s_add_u32 m0, s38, {b*4096}\ns_add_u32 s39, s36, {b*32768}\nbuffer_load_dwordx4 v8, s[4:7], s39 offen lds")
        for gq in range(2):
            for hi in range(2):
                a(f"s_add_u32 m0, s38, {M_XB + gq*8192 + hi*4096}\ns_add_u32 s39, s37, {hi*32*3584 + gq*128}\nbuffer_load_dwordx4 v{9+gq}, s[8:11], s39 offen lds")
    loader_loop(a, "k1m", 16, M_R, 8, m_issue)
    a("s_endpgm")

    a.label("k1_attn")
    srd(a, 8, 42, 512*3072)
    a("s_cmp_ge_u32 s20, 8\ns_cbranch_scc1 k1_aload")
    a(f"""
    s_load_dwordx2 s[46:47], s[0:1], 64
    s_lshl_b32 s24, s21, 7
    s_lshl_b32 s25, s22, 4
    s_add_u32 s24, s24, s25
    s_lshl_b32 s25, s20, 1
    s_add_u32 s24, s24, s25
    s_lshl_b32 s25, s24, 10
    v_lshlrev_b32 v4, 4, v1
    buffer_load_dwordx4 v[76:79], v4, s[4:7], s25 offen
    buffer_load_dwordx4 v[80:83], v4, s[4:7], s25 offen offset:1024
    s_waitcnt lgkmcnt(0)
    global_load_dwordx4 v[84:87], v4, s[46:47]
    """)
    XA0, XA1, WA = 5, 6, 8
    CX0, CX1, CW = 12, 13, 14
    QA = 20; KA = 36; VA = 56
    FX = 76; FY = 108
    a("s_lshr_b32 s28, s20, 1\ns_and_b32 s29, s20, 1")
    rowtile_raddr(a, XA0, XA1, 7)
    a(f"""
    s_lshl_b32 s26, s29, 11
    v_add_u32 v{XA0}, s26, v{XA0}
    v_add_u32 v{XA1}, s26, v{XA1}
    v_lshrrev_b32 v7, 2, v2
    v_lshl_add_u32 v18, v3, 3, v7
    v_lshlrev_b32 v18, 7, v18
    v_and_b32 v19, 3, v2
    v_lshl_add_u32 v18, v19, 3, v18
    v_add_u32 v18, {A_XB}, v18
    v_lshrrev_b32 v7, 3, v2
    v_and_b32 v19, 1, v3
    v_lshl_or_b32 v7, v19, 1, v7
    v_xor_b32 v7, s28, v7
    v_lshl_add_u32 v{WA}, v7, 5, v18
    """)
    for r in range(56): a(f"v_mov_b32 v{QA+r}, 0")
    MC, MP, MP0, AC, AP, ONE = 140, 144, 148, 152, 154, 156
    a(f"v_lshlrev_b32 v7, 2, v3\nv_sub_u32 v7, v2, v7\nv_mov_b32 v18, {hx(f2u(-1e30))}\ns_cmp_eq_u32 s21, 0\ns_cselect_b64 s[36:37], 0, -1")
    for r in range(4):
        a(f"""
        v_subrev_u32 v19, {r}, v7
        v_cmp_gt_u32 vcc, 8, v19
        v_cmp_gt_i32 s[38:39], -8, v19
        v_cndmask_b32 v{MC+r}, v18, 0, vcc
        v_cndmask_b32 v{MP+r}, v18, 0, s[38:39]
        v_cndmask_b32 v{MP0+r}, v18, v{MP+r}, s[36:37]
        v_cndmask_b32 v19, 0, -1, vcc
        """)
        if r % 2 == 0: a(f"v_and_b32 v{AC+r//2}, 0xffff, v19")
        else: a(f"v_and_b32 v19, 0xffff0000, v19\nv_or_b32 v{AC+r//2}, v{AC+r//2}, v19")
        a(f"v_mov_b32 v{ONE+r}, 0x3f803f80")
    a(f"v_not_b32 v{AP}, v{AC}\nv_not_b32 v{AP+1}, v{AC+1}")
    a("v_mov_b32 v88, 0\nv_mov_b32 v89, 0\ns_waitcnt vmcnt(0)")
    for q in range(4):
        a(f"v_dot2c_f32_bf16 v88, v{76+q}, v{84+q}\nv_dot2c_f32_bf16 v89, v{80+q}, v{84+q}")
    for sh in (8, 4, 2, 1):
        a(f"v_add_f32_dpp v88, v88, v88 row_ror:{sh} {DP} bank_mask:0xf\nv_add_f32_dpp v89, v89, v89 row_ror:{sh} {DP} bank_mask:0xf")
    for sw in ("v_permlane16_swap_b32", "v_permlane32_swap_b32"):
        a(f"v_mov_b32 v90, v88\nv_mov_b32 v91, v89\n{sw} v88, v90\n{sw} v89, v91\nv_add_f32 v88, v88, v90\nv_add_f32 v89, v89, v91")
    a(f"""
    v_cmp_eq_u32 vcc, 1, v1
    s_and_b32 s25, s24, 31
    s_lshr_b32 s25, s25, 1
    s_andn2_b32 s24, s24, 31
    s_add_u32 s24, s24, s25
    s_lshl_b32 s24, s24, 2
    s_add_u32 s24, s24, {GATE}
    v_cndmask_b32 v88, v88, v89, vcc
    v_mul_f32 v88, {hx(f2u(-LOG2E))}, v88
    v_exp_f32 v88, v88
    v_lshlrev_b32 v4, 6, v1
    v_add_f32 v88, 1.0, v88
    v_rcp_f32 v88, v88
    s_mov_b64 exec, 3
    buffer_store_dword v88, v4, s[12:15], s24 offen
    s_mov_b64 exec, -1
    """)
    def a_reads(F, kk):
        out = []
        cx = CX0 if kk == 0 else CX1
        for gq in (1, 2, 0):
            for h in range(2):
                out.append(f"ds_read_b64_tr_b16 {vr(F+20+4*gq+2*h,2)}, v{CW} offset:{gq*8192 + kk*4096 + h*512}")
        for b in range(5): out.append(f"ds_read_b128 {vr(F+4*b,4)}, v{cx} offset:{b*4096}")
        return out
    def a_mfma(F):
        out = []
        for b in range(5):
            x = vr(F+4*b, 4)
            out.append(f"v_mfma_f32_16x16x32_bf16 {vr(KA+4*b,4)}, {vr(F+24,4)}, {x}, {vr(KA+4*b,4)}")
            out.append(f"v_mfma_f32_16x16x32_bf16 {vr(VA+4*b,4)}, {x}, {vr(F+28,4)}, {vr(VA+4*b,4)}")
            if b: out.append(f"v_mfma_f32_16x16x32_bf16 {vr(QA+4*(b-1),4)}, {vr(F+20,4)}, {x}, {vr(QA+4*(b-1),4)}")
        return out
    def a_setaddr():
        return [f"v_add_u32 v{CX0}, s31, v{XA0}", f"v_add_u32 v{CX1}, s31, v{XA1}", f"v_add_u32 v{CW}, s31, v{WA}"]
    a("s_mov_b32 s31, 0\ns_barrier")
    for x in a_setaddr(): a(x)
    for x in a_reads(FX, 0): a(x)
    a("s_mov_b32 s30, 0\ns_waitcnt lgkmcnt(0)")
    a.label("k1_aloop")
    interleave(a, a_mfma(FX), a_reads(FY, 1))
    a(f"s_add_u32 s31, s31, {A_ST}\ns_cmp_eq_u32 s31, {A_ST*A_R}\ns_cselect_b32 s31, 0, s31\ns_add_u32 s30, s30, 1\ns_cmp_eq_u32 s30, 8\ns_waitcnt lgkmcnt(0)")
    a("s_cbranch_scc1 k1_aloop_nb\ns_barrier")
    a.label("k1_aloop_nb")
    for x in a_setaddr(): a(x)
    interleave(a, a_mfma(FY), a_reads(FX, 0))
    a("s_waitcnt lgkmcnt(0)\ns_cbranch_scc0 k1_aloop")
    stamp(a, 0, 1, 12, 20)
    QP, KP, VP = 76, 84, 94
    for b in range(5):
        for (src, dst) in ((KA+4*b, KP+2*b), (VA+4*b, VP+2*b)) + (((QA+4*(b-1), QP+2*(b-1)),) if b else ()):
            a(f"v_cvt_pk_bf16_f32 v{dst}, v{src}, v{src+1}\nv_cvt_pk_bf16_f32 v{dst+1}, v{src+2}, v{src+3}")
    SC, SP = 20, 36
    for j in range(1, 5):
        q = vr(QP+2*(j-1), 2)
        a(f"v_mfma_f32_16x16x16_bf16 {vr(SC+4*(j-1),4)}, {vr(KP+2*j,2)}, {q}, {vr(MC,4)}")
        a(f"v_mfma_f32_16x16x16_bf16 {vr(SP+4*(j-1),4)}, {vr(KP+2*(j-1),2)}, {q}, {vr(MP0 if j == 1 else MP,4)}")
    MX = 52; MT = 56; PB = 104; OA = 60; LA = 120
    cs = 0.25 * LOG2E
    a(f"s_mov_b32 s32, {hx(f2u(cs))}")
    for j in range(4):
        for r in range(4): a(f"v_max_f32 v{SC+4*j+r}, v{SC+4*j+r}, v{SP+4*j+r}")
    for j in range(4): a(f"v_max3_f32 v{MX+j}, v{SC+4*j}, v{SC+4*j+1}, v{SC+4*j+2}")
    for j in range(4): a(f"v_max_f32 v{MX+j}, v{MX+j}, v{SC+4*j+3}")
    for sw in ("v_permlane16_swap_b32", "v_permlane32_swap_b32"):
        for j in range(4): a(f"v_mov_b32 v{MT+j}, v{MX+j}")
        for j in range(4): a(f"{sw} v{MX+j}, v{MT+j}")
        for j in range(4): a(f"v_max_f32 v{MX+j}, v{MX+j}, v{MT+j}")
    for j in range(4): a(f"v_mul_f32 v{MX+j}, s32, v{MX+j}")
    for j in range(4):
        for r in range(4): a(f"v_fma_f32 v{SC+4*j+r}, v{SC+4*j+r}, s32, -v{MX+j}")
    for j in range(4):
        for r in range(4): a(f"v_exp_f32 v{SC+4*j+r}, v{SC+4*j+r}")
    for j in range(4):
        a(f"v_cvt_pk_bf16_f32 v{SP+2*j}, v{SC+4*j}, v{SC+4*j+1}\nv_cvt_pk_bf16_f32 v{SP+2*j+1}, v{SC+4*j+2}, v{SC+4*j+3}")
    for j in range(4):
        for q in range(2):
            a(f"v_and_b32 v{PB+4*j+q}, v{AP+q}, v{SP+2*j+q}\nv_and_b32 v{PB+4*j+2+q}, v{AC+q}, v{SP+2*j+q}")
    for j in range(4):
        a(f"v_mfma_f32_16x16x32_bf16 {vr(LA+4*j,4)}, {vr(ONE,4)}, {vr(PB+4*j,4)}, 0")
        a(f"v_mfma_f32_16x16x32_bf16 {vr(OA+4*j,4)}, {vr(VP+2*j,4)}, {vr(PB+4*j,4)}, 0")
    a(f"""
    s_lshl_b32 s34, s21, 3
    s_add_u32 s34, s34, s29
    s_lshl_b32 s34, s34, 4
    s_lshl_b32 s35, s22, 1
    s_add_u32 s34, s34, s35
    s_lshr_b32 s35, s28, 1
    s_add_u32 s34, s34, s35
    s_lshl_b32 s34, s34, 10
    s_and_b32 s35, s28, 1
    s_lshl_b32 s35, s35, 3
    s_add_u32 s34, s34, s35
    s_add_u32 s34, s34, {OB}
    v_lshlrev_b32 v4, 4, v1
    """)
    for j in range(4): a(f"v_rcp_f32 v{LA+4*j}, v{LA+4*j}")
    for j in range(4):
        for r in range(4): a(f"v_mul_f32 v{OA+4*j+r}, v{OA+4*j+r}, v{LA+4*j}")
        a(f"v_cvt_pk_bf16_f32 v{OA+4*j}, v{OA+4*j}, v{OA+4*j+1}\nv_cvt_pk_bf16_f32 v{OA+4*j+1}, v{OA+4*j+2}, v{OA+4*j+3}")
        a(f"buffer_store_dwordx2 {vr(OA+4*j,2)}, v4, s[12:15], s34 offen")
        if j < 3: a(f"s_add_u32 s34, s34, {2*16*1024}")
    stamp(a, 0, 4, 12, 20)
    a("s_endpgm")
    a.label("k1_aload")
    a("s_load_dwordx2 s[44:45], s[0:1], 40\ns_load_dwordx2 s[46:47], s[0:1], 16\ns_load_dwordx2 s[52:53], s[0:1], 56")
    a("s_sub_u32 s29, s20, 8")
    rowtile_voff(a, 8, 29, 10, 6, 7)
    w_voff(3072)
    a(f"""
    s_lshl_b32 s32, s21, 17
    s_sub_u32 s33, s32, 32768
    s_max_i32 s33, s33, 0
    s_lshl_b32 s54, s22, 7
    s_lshl_b32 s34, s29, 10
    s_mov_b32 s31, 0
    """)
    def a_issue():
        a(f"""
        s_add_u32 s35, s30, s23
        s_and_b32 s35, s35, 7
        s_lshl_b32 s36, s35, 7
        s_mul_i32 s37, s35, {64*3072}
        s_add_u32 s37, s37, s54
        s_add_u32 s38, s31, s34
        s_add_u32 s31, s31, {A_ST}
        s_cmp_eq_u32 s31, {A_ST*A_R}
        s_cselect_b32 s31, 0, s31
        s_mov_b32 m0, s38
        s_add_u32 s39, s36, s33
        buffer_load_dwordx4 v8, s[4:7], s39 offen lds
        s_add_u32 s36, s36, s32
        """)
        for b in range(1, 5):
            a(f"s_add_u32 m0, s38, {b*4096}\ns_add_u32 s39, s36, {(b-1)*32768}\nbuffer_load_dwordx4 v8, s[4:7], s39 offen lds")
        for gq in range(3):
            for hi in range(2):
                a(f"s_add_u32 m0, s38, {A_XB + gq*8192 + hi*4096}\ns_add_u32 s39, s37, {hi*32*3072 + gq*1024}\nbuffer_load_dwordx4 v9, s[8:11], s39 offen lds")
    NPF = 5
    def a_prefetch():
        a(f"""
        s_waitcnt lgkmcnt(0)
        s_lshr_b32 s35, s2, 3
        s_sub_u32 s35, s35, 16
        s_lshl_b32 s35, s35, 2
        s_add_u32 s35, s35, s29
        s_and_b32 s36, s2, 7
        s_lshr_b32 s37, s36, 1
        s_lshl_b32 s37, s37, 21
        s_and_b32 s36, s36, 1
        s_lshl_b32 s36, s36, 11
        s_add_u32 s36, s36, s37
        s_lshl_b32 s37, s35, 15
        s_add_u32 s36, s36, s37
        v_lshlrev_b32 v10, 12, v3
        v_lshl_add_u32 v10, v2, 7, v10
        v_add_u32 v10, s36, v10
        v_add_u32 v11, 0x4000, v10
        global_load_dword v12, v10, s[44:45]
        global_load_dword v13, v11, s[44:45]
        s_lshl_b32 s37, s35, 13
        v_lshlrev_b32 v10, 7, v1
        v_add_u32 v10, s37, v10
        global_load_dword v14, v10, s[46:47]
        global_load_dword v15, v10, s[52:53]
        v_add_u32 v11, 0x80000, v10
        v_min_u32 v11, {896*1024-128}, v11
        global_load_dword v16, v11, s[52:53]
        """)
    loader_loop(a, "k1a", 8, A_R, 11, a_issue, tail_extra=a_prefetch, extra_n=NPF)
    a.label(K + "_end")
    a("s_endpgm")

G_ST = 32768; G_R = 5
def gen_k2(a):
    K = "k2_kernel"
    a.kname = K
    kernel_begin(a, K)
    a("s_load_dwordx4 s[40:43], s[0:1], 40\ns_load_dwordx2 s[50:51], s[0:1], 88")
    common_entry(a, 224)
    a("""
    s_and_b32 s24, s2, 7
    s_lshr_b32 s25, s2, 3
    s_and_b32 s27, s24, 1
    s_lshr_b32 s21, s24, 1
    s_lshl_b32 s21, s21, 2
    s_and_b32 s26, s25, 3
    s_add_u32 s21, s21, s26
    s_lshr_b32 s22, s25, 2
    s_lshl_b32 s23, s26, 2
    s_add_u32 s23, s23, s22
    s_waitcnt lgkmcnt(0)
    """)
    srd(a, 12, 50, WS_SIZE)
    stamp(a, 1, 0, 12, 20)
    a("s_cmp_ge_u32 s20, 8\ns_cbranch_scc1 k2_load")
    XA0, XA1, ZA = 5, 6, 8
    CX0, CX1, CZ = 12, 13, 14
    ACC = 20
    ZG = 52
    FX = 84; FY = 108
    T = 132
    a("s_and_b32 s28, s20, 3\ns_lshr_b32 s29, s20, 2")
    a(f"""
    s_lshl_b32 s34, s21, 3
    s_lshl_b32 s35, s28, 1
    s_add_u32 s33, s34, s35
    s_mul_i32 s34, s33, 28
    s_lshl_b32 s35, s22, 2
    s_add_u32 s34, s34, s35
    s_lshl_b32 s35, s29, 1
    s_add_u32 s34, s34, s35
    s_lshl_b32 s36, s34, 10
    s_add_u32 s36, s36, {Z1}
    s_add_u32 s37, s36, {28*1024}
    v_lshlrev_b32 v4, 4, v1
    buffer_load_dwordx4 {vr(FX,4)}, v4, s[12:15], s36 offen
    buffer_load_dwordx4 {vr(FX+4,4)}, v4, s[12:15], s36 offen offset:1024
    buffer_load_dwordx4 {vr(FX+8,4)}, v4, s[12:15], s37 offen
    buffer_load_dwordx4 {vr(FX+12,4)}, v4, s[12:15], s37 offen offset:1024
    s_lshl_b32 s36, s33, 6
    s_add_u32 s36, s36, {GATE}
    v_lshlrev_b32 v7, 2, v2
    buffer_load_dword v{T}, v7, s[12:15], s36 offen
    buffer_load_dword v{T+1}, v7, s[12:15], s36 offen offset:64
    s_lshl_b32 s36, s33, 5
    v_add_u32 v7, s36, v7
    global_load_dword v{T+2}, v7, s[42:43]
    s_lshl_b32 s34, s34, 11
    s_lshl_b32 s35, s27, 10
    s_add_u32 s34, s34, s35
    s_add_u32 s34, s34, {HB}
    s_add_u32 s35, s34, {28*2048}
    """)
    rowtile_raddr(a, XA0, XA1, 7)
    a(f"""
    s_lshl_b32 s24, s28, 12
    v_add_u32 v{XA0}, s24, v{XA0}
    v_add_u32 v{XA1}, s24, v{XA1}
    s_lshl_b32 s24, s29, 12
    s_add_u32 s24, s24, 16384
    v_add_u32 v{ZA}, s24, v4
    s_mov_b32 s32, {hx(f2u(GC2))}
    s_mov_b32 s33, {hx(f2u(GC2))}
    v_mov_b32 v18, {hx(f2u(GC1))}
    v_mov_b32 v19, {hx(f2u(GC1))}
    s_cmp_eq_u32 s27, 0
    s_cselect_b32 s36, -1, 0
    s_waitcnt vmcnt(0)
    v_and_b32 v{T+2}, s36, v{T+2}
    v_lshlrev_b32 v{T+3}, 16, v{T+2}
    v_and_b32 v{T+4}, 0xffff0000, v{T+2}
    v_sub_f32 v{T+6}, 1.0, v{T}
    v_sub_f32 v{T+8}, 1.0, v{T+1}
    """)
    for p in range(2):
        for r in range(16): a(f"v_mov_b32 v{ACC+p*16+r}, v{T+3+p}")
    for p in range(2):
        for m in range(2):
            src = FX + (p*2+m)*4
            prs = [ZG + (p*4+2*m)*4 + 2*q for q in range(4)]
            tm = [T + 10 + 2*q for q in range(4)]
            for q, x in enumerate(prs): a(f"v_lshlrev_b32 v{x}, 16, v{src+q}\nv_and_b32 v{x+1}, 0xffff0000, v{src+q}")
            for x, t in zip(prs, tm): a(f"v_pk_mul_f32 {vr(t,2)}, {vr(x,2)}, {vr(x,2)}")
            for x, t in zip(prs, tm): a(f"v_pk_fma_f32 {vr(t,2)}, {vr(t,2)}, s[32:33], v[18:19]")
            for x, t in zip(prs, tm): a(f"v_pk_mul_f32 {vr(t,2)}, {vr(t,2)}, {vr(x,2)}")
            for t in tm: a(f"v_exp_f32 v{t}, v{t}\nv_exp_f32 v{t+1}, v{t+1}")
            for x in prs: a(f"v_pk_mul_f32 {vr(x,2)}, {vr(x,2)}, {vr(T+6+2*p,2)} op_sel_hi:[1,0]")
            for t in tm: a(f"v_pk_add_f32 {vr(t,2)}, {vr(t,2)}, 1.0 op_sel_hi:[1,0]")
            for t in tm: a(f"v_rcp_f32 v{t}, v{t}\nv_rcp_f32 v{t+1}, v{t+1}")
            for x, t in zip(prs, tm): a(f"v_pk_mul_f32 {vr(x,2)}, {vr(x,2)}, {vr(t,2)}")
    def reads(F, kk):
        cx = CX0 if kk == 0 else CX1
        out = [f"ds_read_b128 {vr(F,4)}, v{cx}", f"ds_read_b128 {vr(F+8,4)}, v{CZ} offset:{kk*8192}", f"ds_read_b128 {vr(F+4,4)}, v{cx} offset:2048"]
        for n in range(1, 4): out.append(f"ds_read_b128 {vr(F+8+4*n,4)}, v{CZ} offset:{kk*8192 + n*1024}")
        return out
    def mf(F):
        out = []
        for n in range(4):
            for p in range(2):
                d = vr(ACC + (p*4+n)*4, 4)
                out.append(f"v_mfma_f32_16x16x32_bf16 {d}, {vr(F+8+4*n,4)}, {vr(F+4*p,4)}, {d}")
        return out
    def setaddr():
        return [f"v_add_u32 v{CX0}, s31, v{XA0}", f"v_add_u32 v{CX1}, s31, v{XA1}", f"v_add_u32 v{CZ}, s31, v{ZA}"]
    a("s_mov_b32 s31, 0\ns_barrier")
    stamp(a, 1, 2, 12, 20)
    for x in setaddr(): a(x)
    for x in reads(FX, 0): a(x)
    a("s_mov_b32 s30, 0\ns_waitcnt lgkmcnt(0)")
    a.label("k2_loop")
    interleave(a, mf(FX), reads(FY, 1))
    a(f"s_add_u32 s31, s31, {G_ST}\ns_cmp_eq_u32 s31, {G_ST*G_R}\ns_cselect_b32 s31, 0, s31\ns_add_u32 s30, s30, 1\ns_cmp_eq_u32 s30, 16\ns_waitcnt lgkmcnt(0)")
    a("s_cbranch_scc1 k2_loop_nb\ns_barrier")
    a.label("k2_loop_nb")
    for x in setaddr(): a(x)
    interleave(a, mf(FY), reads(FX, 0))
    a("s_waitcnt lgkmcnt(0)\ns_cbranch_scc0 k2_loop")
    stamp(a, 1, 1, 12, 20)
    for p in range(2):
        for m in range(2):
            b = (p*4+2*m)*4
            for q in range(4): a(f"v_pk_mul_f32 {vr(ACC+b+2*q,2)}, {vr(ACC+b+2*q,2)}, {vr(ZG+b+2*q,2)}")
            o = FX + (p*2+m)*4
            for q in range(4): a(f"v_cvt_pk_bf16_f32 v{o+q}, v{ACC+b+2*q}, v{ACC+b+2*q+1}")
            a(f"buffer_store_dwordx4 {vr(o,4)}, v4, s[12:15], s{34+p} offen offset:{m*2048}")
    stamp(a, 1, 4, 12, 20)
    a("s_endpgm")
    a.label("k2_load")
    srd(a, 4, 40, 2048*4096)
    a("s_sub_u32 s29, s20, 8")
    rowtile_voff(a, 8, 29, 12, 6, 7)
    a(f"""
    v_lshlrev_b32 v9, 4, v1
    s_lshl_b32 s32, s21, 19
    s_lshl_b32 s33, s27, 11
    s_add_u32 s32, s32, s33
    s_lshl_b32 s33, s27, 5
    s_lshr_b32 s34, s29, 1
    s_add_u32 s33, s33, s34
    s_mul_i32 s33, s33, 56
    s_lshl_b32 s34, s22, 3
    s_add_u32 s33, s33, s34
    s_and_b32 s34, s29, 1
    s_lshl_b32 s34, s34, 2
    s_add_u32 s33, s33, s34
    s_lshl_b32 s33, s33, 10
    s_add_u32 s33, s33, {Z2N}
    s_lshl_b32 s34, s29, 10
    s_lshl_b32 s54, s29, 12
    s_add_u32 s54, s54, 16384
    s_mov_b32 s31, 0
    """)
    def issue():
        a(f"""
        s_add_u32 s35, s30, s23
        s_and_b32 s35, s35, 15
        s_lshl_b32 s36, s35, 7
        s_add_u32 s36, s36, s32
        s_mul_i32 s37, s35, {2*56*1024}
        s_add_u32 s37, s37, s33
        s_add_u32 s38, s31, s34
        s_add_u32 m0, s31, s54
        s_add_u32 s31, s31, {G_ST}
        s_cmp_eq_u32 s31, {G_ST*G_R}
        s_cselect_b32 s31, 0, s31
        """)
        for n in range(4):
            a(f"buffer_load_dwordx4 v9, s[12:15], s37 offen offset:{n*1024} lds")
        for b in range(4):
            a(f"s_add_u32 m0, s38, {b*4096}\ns_add_u32 s39, s36, {b*32*4096}\nbuffer_load_dwordx4 v8, s[4:7], s39 offen lds")
    loader_loop(a, "k2", 16, G_R, 8, issue)
    a.label(K + "_end")
    a("s_endpgm")

def gen_k3(a):
    K = "k3_kernel"
    a.kname = K
    kernel_begin(a, K)
    a("s_load_dwordx2 s[40:41], s[0:1], 16\ns_load_dwordx2 s[42:43], s[0:1], 56\ns_load_dwordx2 s[44:45], s[0:1], 72\ns_load_dwordx2 s[50:51], s[0:1], 88")
    common_entry(a, 256)
    a("""
    s_and_b32 s24, s2, 7
    s_lshr_b32 s25, s2, 3
    s_lshl_b32 s21, s24, 2
    s_and_b32 s26, s25, 3
    s_add_u32 s21, s21, s26
    s_lshr_b32 s22, s25, 2
    s_and_b32 s28, s20, 3
    s_lshr_b32 s29, s20, 2
    s_lshl_b32 s33, s21, 2
    s_add_u32 s33, s33, s28
    s_waitcnt lgkmcnt(0)
    """)
    srd(a, 4, 40, 512*1024)
    srd(a, 8, 42, 896*1024)
    srd(a, 12, 50, WS_SIZE)
    srd(a, 16, 44, 2048*1024)
    stamp(a, 2, 0, 12, 20)
    a(f"""
    v_lshrrev_b32 v7, 3, v1
    s_lshl_b32 s24, s20, 3
    v_add_u32 v7, s24, v7
    v_lshlrev_b32 v7, 10, v7
    v_bfe_u32 v9, v1, 1, 2
    v_xor_b32 v6, v3, v9
    v_and_b32 v9, 1, v1
    v_lshl_or_b32 v9, v6, 1, v9
    v_lshl_add_u32 v9, v9, 4, v7
    s_lshl_b32 s24, s22, 7
    v_add_u32 v9, s24, v9
    v_lshlrev_b32 v4, 4, v1
    s_lshl_b32 s34, s33, 14
    s_lshl_b32 s35, s29, 10
    s_add_u32 s34, s34, s35
    s_add_u32 s34, s34, {OB}
    s_mul_i32 s36, s33, {28*2048}
    s_lshl_b32 s35, s29, 11
    s_add_u32 s36, s36, s35
    s_add_u32 s36, s36, {HB}
    s_lshl_b32 s37, s20, 10
    s_and_b32 s38, s22, 3
    s_mov_b32 s39, s22
    s_cmp_eq_u32 s39, 7
    s_cselect_b32 s39, 0, s39
    """)
    HF = 40
    ACC = 20
    WF = 184
    def issue_w(c):
        slot = c % 10
        if c < 4:
            a(f"s_lshl_b32 s24, s38, 17")
            sr = "s[4:7]"
        else:
            a(f"s_lshl_b32 s24, s39, 17")
            sr = "s[8:11]"
        a(f"s_add_u32 m0, s37, {slot*16384}\ns_add_u32 s25, s24, 0x10000\nbuffer_load_dwordx4 v9, {sr}, s24 offen lds")
        a(f"s_add_u32 m0, s37, {slot*16384+8192}\ns_nop 0\nbuffer_load_dwordx4 v9, {sr}, s25 offen lds")
    def issue_h(c):
        if c < 4:
            a(f"s_lshl_b32 s24, s38, 12\ns_add_u32 s24, s24, s34")
            for u in range(2): a(f"buffer_load_dwordx4 {vr(HF+(2*c+u)*4,4)}, v4, s[12:15], s24 offen offset:{u*2048}")
        else:
            a(f"s_lshl_b32 s24, s39, 13\ns_add_u32 s24, s24, s36\ns_add_u32 s25, s24, 4096")
            for u in range(2):
                for hh in range(2):
                    a(f"buffer_load_dwordx4 {vr(HF+(8+(c-4)*4+u*2+hh)*4,4)}, v4, s[12:15], s{24+u} offen offset:{hh*1024}")
    def adv(c):
        if c < 4: a("s_add_u32 s38, s38, 1\ns_and_b32 s38, s38, 3")
        else: a("s_add_u32 s39, s39, 1\ns_cmp_eq_u32 s39, 7\ns_cselect_b32 s39, 0, s39")
    order = []
    for c in range(10):
        issue_w(c); issue_h(c); adv(c)
        order.append(2 + (2 if c < 4 else 4))
    issue_h(10)
    a(f"s_lshl_b32 s24, s33, 6\ns_add_u32 s24, s24, {GATE}\nv_lshlrev_b32 v7, 2, v2\nbuffer_load_dword v36, v7, s[12:15], s24 offen")
    total = sum(order) + 4 + 1
    WA = 10
    a(f"""
    v_lshrrev_b32 v7, 2, v2
    v_lshl_add_u32 v18, v3, 2, v7
    v_lshlrev_b32 v18, 7, v18
    v_and_b32 v19, 3, v2
    v_lshl_add_u32 v18, v19, 3, v18
    s_lshl_b32 s24, s29, 12
    v_add_u32 v18, s24, v18
    v_lshrrev_b32 v7, 3, v2
    v_and_b32 v19, 1, v3
    v_lshl_or_b32 v7, v19, 1, v7
    v_lshl_add_u32 v{WA}, v7, 5, v18
    v_xor_b32 v{WA+1}, 32, v{WA}
    v_xor_b32 v{WA+2}, 64, v{WA}
    v_xor_b32 v{WA+3}, 0x60, v{WA}
    """)
    for r in range(16): a(f"v_mov_b32 v{ACC+r}, 0")
    done = 0
    extra = 0
    for c in range(11):
        slot = c % 10
        if c < 10:
            done += order[c]
            a(f"s_waitcnt vmcnt({total - done + extra})\ns_barrier")
        else:
            a("s_waitcnt vmcnt(0)\ns_barrier")
        if c == 1:
            issue_w(10); extra = 2
        if slot in (4, 8):
            for q in range(4): a(f"v_add_u32 v{WA+q}, 0x10000, v{WA+q}")
        if c == 10:
            for q in range(4): a(f"v_subrev_u32 v{WA+q}, 0x20000, v{WA+q}")
        for u in range(2):
            for n in range(4):
                for h in range(2):
                    a(f"ds_read_b64_tr_b16 {vr(WF+u*16+4*n+2*h,2)}, v{WA+n} offset:{(slot&3)*16384 + u*8192 + h*2048}")
        if c == 4:
            pass
        for u in range(2):
            a(f"s_waitcnt lgkmcnt({8 if u == 0 else 0})")
            hs = [HF+(2*c+u)*4] if c < 4 else [HF+(8+(c-4)*4+u*2+hh)*4 for hh in range(2)]
            acc = ACC if c < 4 else 216
            for hreg in hs:
                for n in range(4):
                    d = vr(acc+4*n, 4)
                    first = (c == 4 and u == 0 and hreg == hs[0])
                    a(f"v_mfma_f32_16x16x32_bf16 {d}, {vr(WF+u*16+4*n,4)}, {vr(hreg,4)}, {'0' if first else d}")
    stamp(a, 2, 1, 12, 20)
    for r in range(16): a(f"v_fma_f32 v{ACC+r}, v{ACC+r}, v36, v{216+r}")
    a(f"""
    s_barrier
    s_lshl_b32 s24, s20, 11
    v_add_u32 v7, s24, v4
    s_xor_b32 s24, s24, 0x2000
    v_add_u32 v8, s24, v4
    s_cmp_eq_u32 s29, 0
    s_cbranch_scc1 k3_x0
    """)
    for r in range(8): a(f"v_swap_b32 v{ACC+r}, v{ACC+8+r}")
    a.label("k3_x0")
    a(f"""
    ds_write_b128 v7, {vr(ACC+8,4)}
    ds_write_b128 v7, {vr(ACC+12,4)} offset:1024
    s_waitcnt lgkmcnt(0)
    s_barrier
    ds_read_b128 {vr(ACC+8,4)}, v8
    ds_read_b128 {vr(ACC+12,4)}, v8 offset:1024
    s_lshr_b32 s24, s33, 1
    s_lshl_b32 s24, s24, 5
    s_and_b32 s25, s33, 1
    s_add_u32 s24, s24, s25
    s_lshl_b32 s24, s24, 10
    s_lshl_b32 s25, s22, 7
    s_add_u32 s24, s24, s25
    s_lshl_b32 s25, s29, 6
    s_add_u32 s24, s24, s25
    v_lshlrev_b32 v7, 11, v2
    v_and_b32 v8, 1, v3
    v_lshl_add_u32 v7, v8, 5, v7
    v_lshrrev_b32 v8, 1, v3
    v_lshl_add_u32 v7, v8, 4, v7
    s_waitcnt lgkmcnt(0)
    """)
    for q in range(4): a(f"v_pk_add_f32 {vr(ACC+2*q,2)}, {vr(ACC+2*q,2)}, {vr(ACC+8+2*q,2)}")
    for q in range(4): a(f"v_cvt_pk_bf16_f32 v{ACC+q}, v{ACC+2*q}, v{ACC+2*q+1}")
    a(f"v_permlane16_swap_b32 v{ACC}, v{ACC+2}\nv_permlane16_swap_b32 v{ACC+1}, v{ACC+3}")
    a(f"buffer_store_dwordx4 {vr(ACC,4)}, v7, s[16:19], s24 offen")
    stamp(a, 2, 4, 12, 20)
    a.label(K + "_end")
    a("s_endpgm")

HEADER = open("gated_mix__sliding_local_dilated__mixer_gmlp__prompt.s.ref").read().split("; Override launch")[0]

def gen(stamps=False):
    global STAMPS, STV
    STAMPS = stamps
    a = Asm()
    for l in HEADER.strip().split("\n"): a.raw(l)
    a.raw(f"; @launch kernel=k1_kernel grid=(256,1,1) block=(768,1,1) lds={K1_LDS}")
    a.raw(f"; @launch kernel=k2_kernel grid=(224,1,1) block=(768,1,1) lds={G_ST*G_R}")
    a.raw(f"; @launch kernel=k3_kernel grid=(256,1,1) block=(512,1,1) lds=163840")
    a.raw('.amdgcn_target "amdgcn-amd-amdhsa--gfx950"')
    STV = 166; gen_k1(a)
    STV = 166; gen_k2(a)
    STV = 240; gen_k3(a)
    a.raw(kernel_desc("k1_kernel", 168))
    a.raw(kernel_desc("k2_kernel", 168))
    a.raw(kernel_desc("k3_kernel", 256))
    return a.text()

if __name__ == "__main__":
    out = sys.argv[1] if len(sys.argv) > 1 else "gated_mix__sliding_local_dilated__mixer_gmlp__prompt.s"
    open(out, "w").write(gen("--stamps" in sys.argv))
```

```python
import sys, struct
from asmlib import *

def f2u(x): return struct.unpack("<I", struct.pack("<f", x))[0]
def hx(x): return "0x%08x" % (x & 0xffffffff)

Z2N = 0x0000000
Z1  = 0x0380000
OB  = 0x0700000
HB  = 0x0900000
GATE= 0x1000000
MBOX= 0x1010000
STMP= 0x1060000
WS_SIZE = 0x1700000
LOG2E = 1.4426950408889634
GC1 = -2.0 * LOG2E * 0.7978845608028654
GC2 = GC1 * 0.044715

STAMPS = False

def srd(a, d, b, size):
    a(f"s_mov_b32 s{d}, s{b}\ns_and_b32 s{d+1}, s{b+1}, 0xffff\ns_mov_b32 s{d+2}, {hx(size)}\ns_mov_b32 s{d+3}, 0x20000")

def vr(b, n): return f"v[{b}:{b+n-1}]"

def tick(a):
    if not STAMPS: return
    a(f"""
    s_memrealtime s[90:91]
    s_memtime s[94:95]
    s_mov_b32 m0, s93
    s_waitcnt lgkmcnt(0)
    v_writelane_b32 v{STV}, s90, m0
    v_writelane_b32 v{STV-1}, s94, m0
    s_cselect_b32 s92, 1, 0
    s_add_u32 s93, s93, 1
    s_cmp_eq_u32 s92, 1
    """)
def stamp(a, k, slot, wsrd, wave_s):
    if not STAMPS: return
    if slot == 0:
        a(f"s_mov_b32 s93, 0\nv_mov_b32 v{STV}, 0")
    tick(a)
    if slot == 4:
        a(f"""
        s_lshl_b32 s92, s2, 4
        s_add_u32 s92, s92, s{wave_s}
        s_lshl_b32 s92, s92, 8
        s_add_u32 s92, s92, {STMP + k*256*16*256}
        v_lshlrev_b32 v{STV+1}, 2, v1
        buffer_store_dword v{STV}, v{STV+1}, s[{wsrd}:{wsrd+3}], s92 offen
        s_add_u32 s92, s92, 0x300000
        buffer_store_dword v{STV-1}, v{STV+1}, s[{wsrd}:{wsrd+3}], s92 offen
        """)
STV = 166

def gelu_pairs(a, regs, tmp, c):
    pass

def loader_loop(a, name, S, R, n, issue, tail_extra=None, extra_n=0, cnt="s30"):
    L, T = name + "_ld", name + "_tail"
    a(f"s_mov_b32 {cnt}, 0")
    a.label(L)
    issue()
    a(f"s_add_u32 {cnt}, {cnt}, 1\ns_cmp_lt_u32 {cnt}, {R}\ns_cbranch_scc1 {L}")
    a(f"s_cmp_lg_u32 {cnt}, {R}\ns_cbranch_scc1 {L}_b")
    tick(a)
    a(f"s_waitcnt vmcnt({n*(R-1)})")
    tick(a)
    a("s_barrier")
    a.label(L + "_b")
    a(f"s_cmp_ge_u32 {cnt}, {S}\ns_cbranch_scc1 {T}")
    a(f"s_waitcnt vmcnt({n*(R-2)})")
    tick(a)
    a(f"s_barrier")
    tick(a)
    a(f"s_branch {L}")
    a.label(T)
    if tail_extra: tail_extra()
    for s in range(S - R + 1, S):
        a(f"s_waitcnt vmcnt({n*(S-1-s) + extra_n})")
        tick(a)
        a("s_barrier")
        tick(a)
    stamp(a, a.kidx, 4, 12, 20)

def rowtile_voff(a, dst, lw_s, stride_log, t1, t2):
    a(f"""
    s_and_b32 s24, s{lw_s}, 1
    s_lshr_b32 s25, s{lw_s}, 1
    s_lshl_b32 s26, s24, 4
    s_add_u32 s26, s26, s25
    v_lshrrev_b32 v{t1}, 3, v1
    v_lshlrev_b32 v{t1}, 1, v{t1}
    v_add_u32 v{t1}, s26, v{t1}
    v_lshlrev_b32 v{t1}, {stride_log}, v{t1}
    s_lshl_b32 s24, s24, 2
    v_lshrrev_b32 v{t2}, 4, v1
    v_add_u32 v{t2}, s24, v{t2}
    v_and_b32 v{dst}, 7, v1
    v_xor_b32 v{dst}, v{dst}, v{t2}
    v_lshl_add_u32 v{dst}, v{dst}, 4, v{t1}
    """)

def rowtile_raddr(a, dst0, dst1, t1):
    a(f"""
    v_lshrrev_b32 v{t1}, 1, v2
    v_xor_b32 v{t1}, v{t1}, v3
    v_lshlrev_b32 v{t1}, 4, v{t1}
    v_lshl_add_u32 v{dst0}, v2, 7, v{t1}
    v_xor_b32 v{dst1}, 64, v{dst0}
    """)

def interleave(a, mf, rd, per=None):
    mf = list(mf); rd = list(rd)
    n = len(mf)
    k = 0
    lim = max(1, n - 3)
    for idx, m in enumerate(mf):
        a(m)
        want = min(len(rd), -(-len(rd) * (idx + 1) // lim))
        while k < want:
            a(rd[k]); k += 1
    while k < len(rd):
        a(rd[k]); k += 1

def common_entry(a, nwg):
    a(f"""
    s_cmp_ge_u32 s2, {nwg}
    s_cbranch_scc1 {a.kname}_end
    v_lshrrev_b32 v4, 6, v0
    v_and_b32 v1, 63, v0
    v_and_b32 v2, 15, v0
    v_readfirstlane_b32 s20, v4
    v_lshrrev_b32 v3, 4, v1
    """)

A_XB = 20480; A_ST = 45056; A_R = 3
M_XB = 16384; M_ST = 32768; M_R = 4
K1_LDS = A_ST * A_R
NONCE_LDS = M_ST * M_R

def gen_k1(a):
    K = "k1_kernel"; a.kidx = 0
    a.kname = K
    kernel_begin(a, K)
    a("s_load_dwordx4 s[40:43], s[0:1], 0\ns_load_dwordx2 s[44:45], s[0:1], 32\ns_load_dwordx4 s[48:51], s[0:1], 80")
    common_entry(a, 256)
    a("""
    s_and_b32 s24, s2, 7
    s_lshr_b32 s25, s2, 3
    s_lshr_b32 s21, s24, 1
    s_lshl_b32 s21, s21, 2
    s_and_b32 s26, s25, 3
    s_add_u32 s21, s21, s26
    s_lshr_b32 s27, s25, 2
    s_and_b32 s22, s24, 1
    s_lshl_b32 s22, s22, 2
    s_and_b32 s28, s27, 3
    s_add_u32 s22, s22, s28
    s_lshl_b32 s23, s26, 1
    s_add_u32 s23, s23, s27
    s_and_b32 s23, s23, 7
    s_waitcnt lgkmcnt(0)
    """)
    srd(a, 4, 40, 2048*1024)
    srd(a, 12, 50, WS_SIZE)
    stamp(a, 0, 0, 12, 20)
    a(f"s_cmp_ge_u32 s27, 4\ns_cbranch_scc1 k1_attn")
    srd(a, 8, 44, 512*3584)
    a("s_cmp_ge_u32 s20, 8\ns_cbranch_scc1 k1_mload")
    XA0, XA1, WA = 5, 6, 8
    CX0, CX1, CW = 12, 13, 14
    ACC = 20
    FX = 76; FY = 112
    a("s_and_b32 s29, s20, 3")
    rowtile_raddr(a, XA0, XA1, 7)
    a(f"""
    s_lshl_b32 s24, s29, 12
    v_add_u32 v{XA0}, s24, v{XA0}
    v_add_u32 v{XA1}, s24, v{XA1}
    v_lshrrev_b32 v7, 2, v2
    v_lshl_add_u32 v18, v3, 3, v7
    v_lshlrev_b32 v18, 7, v18
    v_and_b32 v19, 3, v2
    v_lshl_add_u32 v18, v19, 3, v18
    v_add_u32 v18, {M_XB}, v18
    v_lshrrev_b32 v7, 3, v2
    v_and_b32 v19, 1, v3
    v_lshl_or_b32 v7, v19, 1, v7
    v_lshl_add_u32 v{WA}, v7, 5, v18
    v_xor_b32 v{WA+1}, 32, v{WA}
    v_xor_b32 v{WA+2}, 64, v{WA}
    v_xor_b32 v{WA+3}, 0x60, v{WA}
    """)
    for r in range(56): a(f"v_mov_b32 v{ACC+r}, 0")
    def m_reads(F, kk):
        out = []
        cx = CX0 if kk == 0 else CX1
        for p in range(2): out.append(f"ds_read_b128 {vr(F+4*p,4)}, v{cx} offset:{p*2048}")
        for n in range(7):
            for h in range(2):
                out.append(f"ds_read_b64_tr_b16 {vr(F+8+4*n+2*h,2)}, v{CW+(n&3)} offset:{(n>>2)*8192 + kk*4096 + h*512}")
        return out
    def m_mfma(F, swap):
        out = []
        for n in range(7):
            for p in range(2):
                d = vr(ACC + (p*7+n)*4, 4); x = vr(F+4*p, 4); w = vr(F+8+4*n, 4)
                out.append(f"v_mfma_f32_16x16x32_bf16 {d}, {w if swap else x}, {x if swap else w}, {d}")
        return out
    def m_setaddr():
        return [f"v_add_u32 v{CX0}, s31, v{XA0}", f"v_add_u32 v{CX1}, s31, v{XA1}"] + [f"v_add_u32 v{CW+q}, s31, v{WA+q}" for q in range(4)]
    def m_loop(name, swap, last_barrier):
        for x in m_setaddr(): a(x)
        for x in m_reads(FX, 0): a(x)
        a("s_mov_b32 s30, 0\ns_waitcnt lgkmcnt(0)")
        a.label(name)
        interleave(a, m_mfma(FX, swap), m_reads(FY, 1))
        a(f"s_add_u32 s31, s31, {M_ST}\ns_and_b32 s31, s31, {M_ST*M_R-1}\ns_add_u32 s30, s30, 1\ns_cmp_eq_u32 s30, 8\ns_waitcnt lgkmcnt(0)")
        if not last_barrier: a(f"s_cbranch_scc1 {name}_nb")
        a("s_barrier")
        if not last_barrier: a.label(name + "_nb")
        for x in m_setaddr(): a(x)
        interleave(a, m_mfma(FY, swap), m_reads(FX, 0))
        a(f"s_waitcnt lgkmcnt(0)\ns_cbranch_scc0 {name}")
    a("s_mov_b32 s31, 0\ns_cmp_ge_u32 s20, 4\ns_cbranch_scc1 k1_z1")
    a("s_setprio 2\ns_barrier")
    m_loop("k1_z2loop", False, True)
    stamp(a, 0, 1, 12, 20)
    a(f"s_mov_b32 s32, {hx(f2u(GC2))}\ns_mov_b32 s33, {hx(f2u(GC2))}\nv_mov_b32 v18, {hx(f2u(GC1))}\nv_mov_b32 v19, {hx(f2u(GC1))}")
    T = FX
    SUM = 148; SQ = 156
    def gelu_tile_pair(n):
        prs = [ACC + (p*7+n)*4 + 2*q for p in range(2) for q in range(2)]
        tm = [T + 2*k for k in range(4)]
        for x, t in zip(prs, tm): a(f"v_pk_mul_f32 {vr(t,2)}, {vr(x,2)}, {vr(x,2)}")
        for x, t in zip(prs, tm): a(f"v_pk_fma_f32 {vr(t,2)}, {vr(t,2)}, s[32:33], v[18:19]")
        for x, t in zip(prs, tm): a(f"v_pk_mul_f32 {vr(t,2)}, {vr(t,2)}, {vr(x,2)}")
        for t in tm: a(f"v_exp_f32 v{t}, v{t}\nv_exp_f32 v{t+1}, v{t+1}")
        for t in tm: a(f"v_pk_add_f32 {vr(t,2)}, {vr(t,2)}, 1.0 op_sel_hi:[1,0]")
        for t in tm: a(f"v_rcp_f32 v{t}, v{t}\nv_rcp_f32 v{t+1}, v{t+1}")
        for x, t in zip(prs, tm): a(f"v_pk_mul_f32 {vr(x,2)}, {vr(x,2)}, {vr(t,2)}")
        for k, x in enumerate(prs):
            if n == 0:
                a(f"v_pk_mul_f32 {vr(SQ+2*k,2)}, {vr(x,2)}, {vr(x,2)}")
            else:
                a(f"v_pk_fma_f32 {vr(SQ+2*k,2)}, {vr(x,2)}, {vr(x,2)}, {vr(SQ+2*k,2)}")
                if n == 1: a(f"v_pk_add_f32 {vr(SUM+2*k,2)}, {vr(x,2)}, {vr(x-4,2)}")
                else: a(f"v_pk_add_f32 {vr(SUM+2*k,2)}, {vr(x,2)}, {vr(SUM+2*k,2)}")
    for n in range(7): gelu_tile_pair(n)
    DP = "row_mask:0xf"
    for base in (SUM, SQ):
        for p in range(2):
            for r in range(2):
                lo, hi = base+p*4+r, base+p*4+r+2
                a(f"v_add_f32_dpp v{lo}, v{lo}, v{lo} row_ror:8 {DP} bank_mask:0x3")
                a(f"v_add_f32_dpp v{lo}, v{hi}, v{hi} row_ror:8 {DP} bank_mask:0xc")
    for base in (SUM, SQ):
        for p in range(2):
            lo, hi = base+p*4, base+p*4+1
            a(f"v_add_f32_dpp v{lo}, v{lo}, v{lo} row_shl:4 {DP} bank_mask:0x5")
            a(f"v_add_f32_dpp v{lo}, v{hi}, v{hi} row_shr:4 {DP} bank_mask:0xa")
    for qp in ("[1,0,3,2]", "[2,3,0,1]"):
        for base in (SUM, SQ):
            for p in range(2):
                lo = base+p*4
                a(f"v_add_f32_dpp v{lo}, v{lo}, v{lo} quad_perm:{qp} {DP} bank_mask:0xf")
    a(f"""
    v_mov_b32 v7, {NONCE_LDS}
    ds_read_b64 {vr(T+2,2)}, v7
    v_and_b32 v7, 1, v2
    v_cmp_eq_u32 vcc, 1, v7
    v_lshrrev_b32 v4, 2, v2
    v_lshl_add_u32 v4, v4, 1, v7
    v_lshl_add_u32 v4, v3, 3, v4
    v_lshlrev_b32 v4, 4, v4
    v_cndmask_b32 v{T}, v{SUM}, v{SUM+4}, vcc
    v_cndmask_b32 v{T+1}, v{SQ}, v{SQ+4}, vcc
    s_lshl_b32 s34, s21, 2
    s_add_u32 s34, s34, s29
    s_lshl_b32 s34, s34, 12
    s_add_u32 s34, s34, {MBOX}
    s_lshl_b32 s35, s22, 9
    s_add_u32 s35, s35, s34
    s_mov_b32 s36, 0x33333333
    s_mov_b32 s37, 0x33333333
    s_waitcnt lgkmcnt(0)
    s_mov_b64 exec, s[36:37]
    buffer_store_dwordx4 {vr(T,4)}, v4, s[12:15], s35 offen sc0 sc1
    s_mov_b64 exec, -1
    v_readfirstlane_b32 s38, v{T+2}
    v_readfirstlane_b32 s39, v{T+3}
    s_setprio 0
    """)
    stamp(a, 0, 2, 12, 20)
    for s in range(9, 16): a("s_barrier")
    a(f"""
    v_and_b32 v4, 7, v2
    v_lshl_add_u32 v4, v3, 3, v4
    v_lshlrev_b32 v4, 4, v4
    v_lshrrev_b32 v7, 3, v2
    v_lshl_add_u32 v4, v7, 9, v4
    """)
    a("s_mov_b32 s30, 0")
    a.label("k1_poll")
    P = T + 8
    for j in range(4): a(f"buffer_load_dwordx4 {vr(P+4*j,4)}, v4, s[12:15], s34 offen offset:{j*1024} sc0 sc1")
    a("s_waitcnt vmcnt(0)")
    a(f"v_xor_b32 v7, s38, v{P+2}\nv_xor_b32 v5, s39, v{P+3}\nv_or_b32 v7, v7, v5")
    for j in range(1, 4):
        a(f"v_xor_b32 v5, s38, v{P+4*j+2}\nv_xor_b32 v6, s39, v{P+4*j+3}\nv_or3_b32 v7, v7, v5, v6")
    a("v_cmp_ne_u32 vcc, 0, v7\ns_add_u32 s30, s30, 1\ns_cmp_gt_u32 s30, 0x40000\ns_cbranch_scc1 k1_pollx\ns_cbranch_vccnz k1_poll")
    a.label("k1_pollx")
    stamp(a, 0, 3, 12, 20)
    a(f"""
    v_pk_add_f32 {vr(P,2)}, {vr(P,2)}, {vr(P+4,2)}
    v_pk_add_f32 {vr(P+8,2)}, {vr(P+8,2)}, {vr(P+12,2)}
    v_pk_add_f32 {vr(P,2)}, {vr(P,2)}, {vr(P+8,2)}
    v_add_f32_dpp v{P}, v{P}, v{P} row_ror:8 {DP} bank_mask:0xf
    v_add_f32_dpp v{P+1}, v{P+1}, v{P+1} row_ror:8 {DP} bank_mask:0xf
    v_mul_f32 v{P}, {hx(f2u(1.0/896))}, v{P}
    v_mul_f32 v{P+1}, {hx(f2u(1.0/896))}, v{P+1}
    v_fma_f32 v{P+1}, -v{P}, v{P}, v{P+1}
    v_max_f32 v{P+1}, 0, v{P+1}
    v_add_f32 v{P+1}, {hx(f2u(1e-5))}, v{P+1}
    v_rsq_f32 v{P+1}, v{P+1}
    v_mul_f32 v{P}, v{P}, v{P+1}
    v_sub_f32 v{P}, 0, v{P}
    """)
    for p in range(2):
        for r in range(4):
            a(f"v_mov_b32_dpp v{SQ+p*4+r}, v{P+1} row_newbcast:{2*r+p} {DP} bank_mask:0xf")
            a(f"v_mov_b32_dpp v{SUM+p*4+r}, v{P} row_newbcast:{2*r+p} {DP} bank_mask:0xf")
    a(f"""
    s_lshl_b32 s34, s21, 2
    s_add_u32 s34, s34, s29
    s_mul_i32 s34, s34, 56
    s_mul_i32 s35, s22, 7
    s_add_u32 s34, s34, s35
    s_lshl_b32 s34, s34, 10
    s_add_u32 s34, s34, {Z2N}
    s_add_u32 s35, s34, 4096
    v_lshlrev_b32 v4, 4, v1
    """)
    for n in range(7):
        for p in range(2):
            for q in range(2):
                x = ACC + (p*7+n)*4 + 2*q
                a(f"v_pk_fma_f32 {vr(x,2)}, {vr(x,2)}, {vr(SQ+p*4+2*q,2)}, {vr(SUM+p*4+2*q,2)}")
        o = FY + 4*n
        for r in range(4): a(f"v_cvt_pk_bf16_f32 v{o+r}, v{ACC+n*4+r}, v{ACC+(7+n)*4+r}")
        a(f"buffer_store_dwordx4 {vr(o,4)}, v4, s[12:15], s{34 + (n>>2)} offen offset:{(n&3)*1024}")
    stamp(a, 0, 4, 12, 20)
    a("s_endpgm")
    a.label("k1_z1")
    a("s_cmp_lg_u32 s20, 4\ns_cbranch_scc1 k1_z1w")
    a(f"""
    s_memrealtime s[36:37]
    s_lshl_b32 s38, s21, 4
    v_mov_b32 v7, s38
    v_mov_b32 v{FX+2}, 0
    v_mov_b32 v{FX+3}, 0
    s_waitcnt lgkmcnt(0)
    s_or_b32 s36, s36, 1
    v_mov_b32 v{FX}, s36
    v_mov_b32 v{FX+1}, s37
    s_mov_b64 exec, 1
    global_atomic_cmpswap_x2 {vr(FX+4,2)}, v7, {vr(FX,4)}, s[48:49] sc0 sc1
    s_mov_b64 exec, -1
    """)
    for s in range(7): a("s_barrier")
    a(f"""
    s_waitcnt vmcnt(0)
    s_mov_b64 exec, 1
    v_cmp_eq_u32 vcc, 0, v{FX+4}
    v_mov_b32 v7, {NONCE_LDS}
    v_cndmask_b32 v{FX+4}, v{FX+4}, v{FX}, vcc
    v_cndmask_b32 v{FX+5}, v{FX+5}, v{FX+1}, vcc
    ds_write_b64 v7, {vr(FX+4,2)}
    s_mov_b64 exec, -1
    s_waitcnt lgkmcnt(0)
    s_barrier
    s_barrier
    s_branch k1_z1go
    """)
    a.label("k1_z1w")
    for s in range(9): a("s_barrier")
    a.label("k1_z1go")
    m_loop("k1_z1loop", True, False)
    stamp(a, 0, 1, 12, 20)
    a(f"""
    s_lshl_b32 s34, s21, 3
    s_lshl_b32 s35, s29, 1
    s_add_u32 s34, s34, s35
    s_mul_i32 s34, s34, 28
    s_mul_i32 s35, s22, 7
    s_lshr_b32 s35, s35, 1
    s_add_u32 s34, s34, s35
    s_lshl_b32 s34, s34, 10
    s_add_u32 s34, s34, {Z1}
    s_add_u32 s35, s34, {28*1024}
    v_lshlrev_b32 v4, 4, v1
    """)
    for p in range(2):
        for n in range(7):
            x = ACC + (p*7+n)*4; o = FX + p*16 + 2*n
            a(f"v_cvt_pk_bf16_f32 v{o}, v{x}, v{x+1}\nv_cvt_pk_bf16_f32 v{o+1}, v{x+2}, v{x+3}")
    a("s_bitcmp1_b32 s22, 0\ns_cbranch_scc1 k1_z1odd")
    for p in range(2):
        o = FX + p*16
        for m in range(3): a(f"buffer_store_dwordx4 {vr(o+4*m,4)}, v4, s[12:15], s{34+p} offen offset:{m*1024}")
        a(f"buffer_store_dwordx2 {vr(o+12,2)}, v4, s[12:15], s{34+p} offen offset:{3*1024}")
    stamp(a, 0, 4, 12, 20)
    a("s_endpgm")
    a.label("k1_z1odd")
    for p in range(2):
        o = FX + p*16
        a(f"buffer_store_dwordx2 {vr(o,2)}, v4, s[12:15], s{34+p} offen offset:8")
        for m in range(3): a(f"buffer_store_dwordx4 {vr(o+2+4*m,4)}, v4, s[12:15], s{34+p} offen offset:{(m+1)*1024}")
    stamp(a, 0, 4, 12, 20)
    a("s_endpgm")
    def w_voff(stride):
        a(f"""
        v_lshrrev_b32 v7, 3, v1
        s_lshl_b32 s24, s29, 3
        v_add_u32 v7, s24, v7
        s_movk_i32 s24, {stride}
        v_mul_lo_u32 v7, v7, s24
        v_bfe_u32 v6, v1, 4, 1
        s_and_b32 s24, s29, 1
        s_lshl_b32 s24, s24, 1
        v_or_b32 v6, s24, v6
        v_bfe_u32 v9, v1, 1, 2
        v_xor_b32 v6, v6, v9
        v_and_b32 v9, 1, v1
        v_lshl_or_b32 v9, v6, 1, v9
        v_lshl_add_u32 v9, v9, 4, v7
        """)
    a.label("k1_mload")
    a("s_sub_u32 s29, s20, 8")
    rowtile_voff(a, 8, 29, 10, 6, 7)
    w_voff(3584)
    a(f"""
    v_cmp_eq_u32 vcc, 3, v6
    v_bfrev_b32 v7, 1
    s_lshl_b32 s32, s21, 17
    s_mul_i32 s33, s22, 224
    s_lshl_b32 s34, s29, 10
    v_cndmask_b32 v10, v9, v7, vcc
    """)
    def m_issue():
        a(f"""
        s_add_u32 s35, s30, s23
        s_and_b32 s35, s35, 7
        s_lshl_b32 s36, s35, 7
        s_add_u32 s36, s36, s32
        s_mul_i32 s37, s35, {64*3584}
        s_add_u32 s37, s37, s33
        s_cmp_lt_u32 s30, 8
        s_cselect_b32 s38, 1792, 0
        s_add_u32 s37, s37, s38
        s_and_b32 s38, s30, {M_R-1}
        s_lshl_b32 s38, s38, 15
        s_add_u32 s38, s38, s34
        """)
        for b in range(4):
            a(f"s_add_u32 m0, s38, {b*4096}\ns_add_u32 s39, s36, {b*32768}\nbuffer_load_dwordx4 v8, s[4:7], s39 offen lds")
        for gq in range(2):
            for hi in range(2):
                a(f"s_add_u32 m0, s38, {M_XB + gq*8192 + hi*4096}\ns_add_u32 s39, s37, {hi*32*3584 + gq*128}\nbuffer_load_dwordx4 v{9+gq}, s[8:11], s39 offen lds")
    loader_loop(a, "k1m", 16, M_R, 8, m_issue)
    a("s_endpgm")

    a.label("k1_attn")
    srd(a, 8, 42, 512*3072)
    a("s_cmp_ge_u32 s20, 8\ns_cbranch_scc1 k1_aload")
    a(f"""
    s_load_dwordx2 s[46:47], s[0:1], 64
    s_lshl_b32 s24, s21, 7
    s_lshl_b32 s25, s22, 4
    s_add_u32 s24, s24, s25
    s_lshl_b32 s25, s20, 1
    s_add_u32 s24, s24, s25
    s_lshl_b32 s25, s24, 10
    v_lshlrev_b32 v4, 4, v1
    buffer_load_dwordx4 v[76:79], v4, s[4:7], s25 offen
    buffer_load_dwordx4 v[80:83], v4, s[4:7], s25 offen offset:1024
    s_waitcnt lgkmcnt(0)
    global_load_dwordx4 v[84:87], v4, s[46:47]
    """)
    XA0, XA1, WA = 5, 6, 8
    CX0, CX1, CW = 12, 13, 14
    QA = 20; KA = 36; VA = 56
    FX = 76; FY = 108
    a("s_lshr_b32 s28, s20, 1\ns_and_b32 s29, s20, 1")
    rowtile_raddr(a, XA0, XA1, 7)
    a(f"""
    s_lshl_b32 s26, s29, 11
    v_add_u32 v{XA0}, s26, v{XA0}
    v_add_u32 v{XA1}, s26, v{XA1}
    v_lshrrev_b32 v7, 2, v2
    v_lshl_add_u32 v18, v3, 3, v7
    v_lshlrev_b32 v18, 7, v18
    v_and_b32 v19, 3, v2
    v_lshl_add_u32 v18, v19, 3, v18
    v_add_u32 v18, {A_XB}, v18
    v_lshrrev_b32 v7, 3, v2
    v_and_b32 v19, 1, v3
    v_lshl_or_b32 v7, v19, 1, v7
    v_xor_b32 v7, s28, v7
    v_lshl_add_u32 v{WA}, v7, 5, v18
    """)
    for r in range(56): a(f"v_mov_b32 v{QA+r}, 0")
    MC, MP, MP0, AC, AP, ONE = 140, 144, 148, 152, 154, 156
    a(f"v_lshlrev_b32 v7, 2, v3\nv_sub_u32 v7, v2, v7\nv_mov_b32 v18, {hx(f2u(-1e30))}\ns_cmp_eq_u32 s21, 0\ns_cselect_b64 s[36:37], 0, -1")
    for r in range(4):
        a(f"""
        v_subrev_u32 v19, {r}, v7
        v_cmp_gt_u32 vcc, 8, v19
        v_cmp_gt_i32 s[38:39], -8, v19
        v_cndmask_b32 v{MC+r}, v18, 0, vcc
        v_cndmask_b32 v{MP+r}, v18, 0, s[38:39]
        v_cndmask_b32 v{MP0+r}, v18, v{MP+r}, s[36:37]
        v_cndmask_b32 v19, 0, -1, vcc
        """)
        if r % 2 == 0: a(f"v_and_b32 v{AC+r//2}, 0xffff, v19")
        else: a(f"v_and_b32 v19, 0xffff0000, v19\nv_or_b32 v{AC+r//2}, v{AC+r//2}, v19")
        a(f"v_mov_b32 v{ONE+r}, 0x3f803f80")
    a(f"v_not_b32 v{AP}, v{AC}\nv_not_b32 v{AP+1}, v{AC+1}")
    a("v_mov_b32 v88, 0\nv_mov_b32 v89, 0\ns_waitcnt vmcnt(0)")
    for q in range(4):
        a(f"v_dot2c_f32_bf16 v88, v{76+q}, v{84+q}\nv_dot2c_f32_bf16 v89, v{80+q}, v{84+q}")
    for sh in (8, 4, 2, 1):
        a(f"v_add_f32_dpp v88, v88, v88 row_ror:{sh} {DP} bank_mask:0xf\nv_add_f32_dpp v89, v89, v89 row_ror:{sh} {DP} bank_mask:0xf")
    for sw in ("v_permlane16_swap_b32", "v_permlane32_swap_b32"):
        a(f"v_mov_b32 v90, v88\nv_mov_b32 v91, v89\n{sw} v88, v90\n{sw} v89, v91\nv_add_f32 v88, v88, v90\nv_add_f32 v89, v89, v91")
    a(f"""
    v_cmp_eq_u32 vcc, 1, v1
    s_and_b32 s25, s24, 31
    s_lshr_b32 s25, s25, 1
    s_andn2_b32 s24, s24, 31
    s_add_u32 s24, s24, s25
    s_lshl_b32 s24, s24, 2
    s_add_u32 s24, s24, {GATE}
    v_cndmask_b32 v88, v88, v89, vcc
    v_mul_f32 v88, {hx(f2u(-LOG2E))}, v88
    v_exp_f32 v88, v88
    v_lshlrev_b32 v4, 6, v1
    v_add_f32 v88, 1.0, v88
    v_rcp_f32 v88, v88
    s_mov_b64 exec, 3
    buffer_store_dword v88, v4, s[12:15], s24 offen
    s_mov_b64 exec, -1
    """)
    def a_reads(F, kk):
        out = []
        cx = CX0 if kk == 0 else CX1
        for gq in (1, 2, 0):
            for h in range(2):
                out.append(f"ds_read_b64_tr_b16 {vr(F+20+4*gq+2*h,2)}, v{CW} offset:{gq*8192 + kk*4096 + h*512}")
        for b in range(5): out.append(f"ds_read_b128 {vr(F+4*b,4)}, v{cx} offset:{b*4096}")
        return out
    def a_mfma(F):
        out = []
        for b in range(5):
            x = vr(F+4*b, 4)
            out.append(f"v_mfma_f32_16x16x32_bf16 {vr(KA+4*b,4)}, {vr(F+24,4)}, {x}, {vr(KA+4*b,4)}")
            out.append(f"v_mfma_f32_16x16x32_bf16 {vr(VA+4*b,4)}, {x}, {vr(F+28,4)}, {vr(VA+4*b,4)}")
            if b: out.append(f"v_mfma_f32_16x16x32_bf16 {vr(QA+4*(b-1),4)}, {vr(F+20,4)}, {x}, {vr(QA+4*(b-1),4)}")
        return out
    def a_setaddr():
        return [f"v_add_u32 v{CX0}, s31, v{XA0}", f"v_add_u32 v{CX1}, s31, v{XA1}", f"v_add_u32 v{CW}, s31, v{WA}"]
    a("s_mov_b32 s31, 0\ns_barrier")
    for x in a_setaddr(): a(x)
    for x in a_reads(FX, 0): a(x)
    a("s_mov_b32 s30, 0\ns_waitcnt lgkmcnt(0)")
    a.label("k1_aloop")
    interleave(a, a_mfma(FX), a_reads(FY, 1))
    a(f"s_add_u32 s31, s31, {A_ST}\ns_cmp_eq_u32 s31, {A_ST*A_R}\ns_cselect_b32 s31, 0, s31\ns_add_u32 s30, s30, 1\ns_cmp_eq_u32 s30, 8\ns_waitcnt lgkmcnt(0)")
    a("s_cbranch_scc1 k1_aloop_nb\ns_barrier")
    a.label("k1_aloop_nb")
    for x in a_setaddr(): a(x)
    interleave(a, a_mfma(FY), a_reads(FX, 0))
    a("s_waitcnt lgkmcnt(0)\ns_cbranch_scc0 k1_aloop")
    stamp(a, 0, 1, 12, 20)
    QP, KP, VP = 76, 84, 94
    for b in range(5):
        for (src, dst) in ((KA+4*b, KP+2*b), (VA+4*b, VP+2*b)) + (((QA+4*(b-1), QP+2*(b-1)),) if b else ()):
            a(f"v_cvt_pk_bf16_f32 v{dst}, v{src}, v{src+1}\nv_cvt_pk_bf16_f32 v{dst+1}, v{src+2}, v{src+3}")
    SC, SP = 20, 36
    for j in range(1, 5):
        q = vr(QP+2*(j-1), 2)
        a(f"v_mfma_f32_16x16x16_bf16 {vr(SC+4*(j-1),4)}, {vr(KP+2*j,2)}, {q}, {vr(MC,4)}")
        a(f"v_mfma_f32_16x16x16_bf16 {vr(SP+4*(j-1),4)}, {vr(KP+2*(j-1),2)}, {q}, {vr(MP0 if j == 1 else MP,4)}")
    MX = 52; MT = 56; PB = 104; OA = 60; LA = 120
    cs = 0.25 * LOG2E
    a(f"s_mov_b32 s32, {hx(f2u(cs))}")
    for j in range(4):
        for r in range(4): a(f"v_max_f32 v{SC+4*j+r}, v{SC+4*j+r}, v{SP+4*j+r}")
    for j in range(4): a(f"v_max3_f32 v{MX+j}, v{SC+4*j}, v{SC+4*j+1}, v{SC+4*j+2}")
    for j in range(4): a(f"v_max_f32 v{MX+j}, v{MX+j}, v{SC+4*j+3}")
    for sw in ("v_permlane16_swap_b32", "v_permlane32_swap_b32"):
        for j in range(4): a(f"v_mov_b32 v{MT+j}, v{MX+j}")
        for j in range(4): a(f"{sw} v{MX+j}, v{MT+j}")
        for j in range(4): a(f"v_max_f32 v{MX+j}, v{MX+j}, v{MT+j}")
    for j in range(4): a(f"v_mul_f32 v{MX+j}, s32, v{MX+j}")
    for j in range(4):
        for r in range(4): a(f"v_fma_f32 v{SC+4*j+r}, v{SC+4*j+r}, s32, -v{MX+j}")
    for j in range(4):
        for r in range(4): a(f"v_exp_f32 v{SC+4*j+r}, v{SC+4*j+r}")
    for j in range(4):
        a(f"v_cvt_pk_bf16_f32 v{SP+2*j}, v{SC+4*j}, v{SC+4*j+1}\nv_cvt_pk_bf16_f32 v{SP+2*j+1}, v{SC+4*j+2}, v{SC+4*j+3}")
    for j in range(4):
        for q in range(2):
            a(f"v_and_b32 v{PB+4*j+q}, v{AP+q}, v{SP+2*j+q}\nv_and_b32 v{PB+4*j+2+q}, v{AC+q}, v{SP+2*j+q}")
    for j in range(4):
        a(f"v_mfma_f32_16x16x32_bf16 {vr(LA+4*j,4)}, {vr(ONE,4)}, {vr(PB+4*j,4)}, 0")
        a(f"v_mfma_f32_16x16x32_bf16 {vr(OA+4*j,4)}, {vr(VP+2*j,4)}, {vr(PB+4*j,4)}, 0")
    a(f"""
    s_lshl_b32 s34, s21, 3
    s_add_u32 s34, s34, s29
    s_lshl_b32 s34, s34, 4
    s_lshl_b32 s35, s22, 1
    s_add_u32 s34, s34, s35
    s_lshr_b32 s35, s28, 1
    s_add_u32 s34, s34, s35
    s_lshl_b32 s34, s34, 10
    s_and_b32 s35, s28, 1
    s_lshl_b32 s35, s35, 3
    s_add_u32 s34, s34, s35
    s_add_u32 s34, s34, {OB}
    v_lshlrev_b32 v4, 4, v1
    """)
    for j in range(4): a(f"v_rcp_f32 v{LA+4*j}, v{LA+4*j}")
    for j in range(4):
        for r in range(4): a(f"v_mul_f32 v{OA+4*j+r}, v{OA+4*j+r}, v{LA+4*j}")
        a(f"v_cvt_pk_bf16_f32 v{OA+4*j}, v{OA+4*j}, v{OA+4*j+1}\nv_cvt_pk_bf16_f32 v{OA+4*j+1}, v{OA+4*j+2}, v{OA+4*j+3}")
        a(f"buffer_store_dwordx2 {vr(OA+4*j,2)}, v4, s[12:15], s34 offen")
        if j < 3: a(f"s_add_u32 s34, s34, {2*16*1024}")
    stamp(a, 0, 4, 12, 20)
    a("s_endpgm")
    a.label("k1_aload")
    a("s_load_dwordx2 s[44:45], s[0:1], 40\ns_load_dwordx2 s[46:47], s[0:1], 16\ns_load_dwordx2 s[52:53], s[0:1], 56")
    a("s_sub_u32 s29, s20, 8")
    rowtile_voff(a, 8, 29, 10, 6, 7)
    w_voff(3072)
    a(f"""
    s_lshl_b32 s32, s21, 17
    s_sub_u32 s33, s32, 32768
    s_max_i32 s33, s33, 0
    s_lshl_b32 s54, s22, 7
    s_lshl_b32 s34, s29, 10
    s_mov_b32 s31, 0
    """)
    def a_issue():
        a(f"""
        s_add_u32 s35, s30, s23
        s_and_b32 s35, s35, 7
        s_lshl_b32 s36, s35, 7
        s_mul_i32 s37, s35, {64*3072}
        s_add_u32 s37, s37, s54
        s_add_u32 s38, s31, s34
        s_add_u32 s31, s31, {A_ST}
        s_cmp_eq_u32 s31, {A_ST*A_R}
        s_cselect_b32 s31, 0, s31
        s_mov_b32 m0, s38
        s_add_u32 s39, s36, s33
        buffer_load_dwordx4 v8, s[4:7], s39 offen lds
        s_add_u32 s36, s36, s32
        """)
        for b in range(1, 5):
            a(f"s_add_u32 m0, s38, {b*4096}\ns_add_u32 s39, s36, {(b-1)*32768}\nbuffer_load_dwordx4 v8, s[4:7], s39 offen lds")
        for gq in range(3):
            for hi in range(2):
                a(f"s_add_u32 m0, s38, {A_XB + gq*8192 + hi*4096}\ns_add_u32 s39, s37, {hi*32*3072 + gq*1024}\nbuffer_load_dwordx4 v9, s[8:11], s39 offen lds")
    NPF = 5
    def a_prefetch():
        a(f"""
        s_waitcnt lgkmcnt(0)
        s_lshr_b32 s35, s2, 3
        s_sub_u32 s35, s35, 16
        s_lshl_b32 s35, s35, 2
        s_add_u32 s35, s35, s29
        s_and_b32 s36, s2, 7
        s_lshr_b32 s37, s36, 1
        s_lshl_b32 s37, s37, 21
        s_and_b32 s36, s36, 1
        s_lshl_b32 s36, s36, 11
        s_add_u32 s36, s36, s37
        s_lshl_b32 s37, s35, 15
        s_add_u32 s36, s36, s37
        v_lshlrev_b32 v10, 12, v3
        v_lshl_add_u32 v10, v2, 7, v10
        v_add_u32 v10, s36, v10
        v_add_u32 v11, 0x4000, v10
        global_load_dword v12, v10, s[44:45]
        global_load_dword v13, v11, s[44:45]
        s_lshl_b32 s37, s35, 13
        v_lshlrev_b32 v10, 7, v1
        v_add_u32 v10, s37, v10
        global_load_dword v14, v10, s[46:47]
        global_load_dword v15, v10, s[52:53]
        v_add_u32 v11, 0x80000, v10
        v_min_u32 v11, {896*1024-128}, v11
        global_load_dword v16, v11, s[52:53]
        """)
    loader_loop(a, "k1a", 8, A_R, 11, a_issue, tail_extra=a_prefetch, extra_n=NPF)
    a.label(K + "_end")
    a("s_endpgm")

G_ST = 32768; G_R = 5
def gen_k2(a):
    K = "k2_kernel"; a.kidx = 1
    a.kname = K
    kernel_begin(a, K)
    a("s_load_dwordx4 s[40:43], s[0:1], 40\ns_load_dwordx2 s[50:51], s[0:1], 88")
    common_entry(a, 224)
    a("""
    s_and_b32 s24, s2, 7
    s_lshr_b32 s25, s2, 3
    s_and_b32 s27, s24, 1
    s_lshr_b32 s21, s24, 1
    s_lshl_b32 s21, s21, 2
    s_and_b32 s26, s25, 3
    s_add_u32 s21, s21, s26
    s_lshr_b32 s22, s25, 2
    s_lshl_b32 s23, s26, 2
    s_add_u32 s23, s23, s22
    s_waitcnt lgkmcnt(0)
    """)
    srd(a, 12, 50, WS_SIZE)
    stamp(a, 1, 0, 12, 20)
    a("s_cmp_ge_u32 s20, 8\ns_cbranch_scc1 k2_load")
    XA0, XA1, ZA = 5, 6, 8
    CX0, CX1, CZ = 12, 13, 14
    ACC = 20
    ZG = 52
    FX = 84; FY = 108
    T = 132
    a("s_and_b32 s28, s20, 3\ns_lshr_b32 s29, s20, 2")
    a(f"""
    s_lshl_b32 s34, s21, 3
    s_lshl_b32 s35, s28, 1
    s_add_u32 s33, s34, s35
    s_mul_i32 s34, s33, 28
    s_lshl_b32 s35, s22, 2
    s_add_u32 s34, s34, s35
    s_lshl_b32 s35, s29, 1
    s_add_u32 s34, s34, s35
    s_lshl_b32 s36, s34, 10
    s_add_u32 s36, s36, {Z1}
    s_add_u32 s37, s36, {28*1024}
    v_lshlrev_b32 v4, 4, v1
    buffer_load_dwordx4 {vr(FX,4)}, v4, s[12:15], s36 offen
    buffer_load_dwordx4 {vr(FX+4,4)}, v4, s[12:15], s36 offen offset:1024
    buffer_load_dwordx4 {vr(FX+8,4)}, v4, s[12:15], s37 offen
    buffer_load_dwordx4 {vr(FX+12,4)}, v4, s[12:15], s37 offen offset:1024
    s_lshl_b32 s36, s33, 6
    s_add_u32 s36, s36, {GATE}
    v_lshlrev_b32 v7, 2, v2
    buffer_load_dword v{T}, v7, s[12:15], s36 offen
    buffer_load_dword v{T+1}, v7, s[12:15], s36 offen offset:64
    s_lshl_b32 s36, s33, 5
    v_add_u32 v7, s36, v7
    global_load_dword v{T+2}, v7, s[42:43]
    s_lshl_b32 s34, s34, 11
    s_lshl_b32 s35, s27, 10
    s_add_u32 s34, s34, s35
    s_add_u32 s34, s34, {HB}
    s_add_u32 s35, s34, {28*2048}
    """)
    rowtile_raddr(a, XA0, XA1, 7)
    a(f"""
    s_lshl_b32 s24, s28, 12
    v_add_u32 v{XA0}, s24, v{XA0}
    v_add_u32 v{XA1}, s24, v{XA1}
    s_lshl_b32 s24, s29, 12
    s_add_u32 s24, s24, 16384
    v_add_u32 v{ZA}, s24, v4
    s_mov_b32 s32, {hx(f2u(GC2))}
    s_mov_b32 s33, {hx(f2u(GC2))}
    v_mov_b32 v18, {hx(f2u(GC1))}
    v_mov_b32 v19, {hx(f2u(GC1))}
    s_cmp_eq_u32 s27, 0
    s_cselect_b32 s36, -1, 0
    s_waitcnt vmcnt(0)
    v_and_b32 v{T+2}, s36, v{T+2}
    v_lshlrev_b32 v{T+3}, 16, v{T+2}
    v_and_b32 v{T+4}, 0xffff0000, v{T+2}
    v_sub_f32 v{T+6}, 1.0, v{T}
    v_sub_f32 v{T+8}, 1.0, v{T+1}
    """)
    for p in range(2):
        for r in range(16): a(f"v_mov_b32 v{ACC+p*16+r}, v{T+3+p}")
    for p in range(2):
        for m in range(2):
            src = FX + (p*2+m)*4
            prs = [ZG + (p*4+2*m)*4 + 2*q for q in range(4)]
            tm = [T + 10 + 2*q for q in range(4)]
            for q, x in enumerate(prs): a(f"v_lshlrev_b32 v{x}, 16, v{src+q}\nv_and_b32 v{x+1}, 0xffff0000, v{src+q}")
            for x, t in zip(prs, tm): a(f"v_pk_mul_f32 {vr(t,2)}, {vr(x,2)}, {vr(x,2)}")
            for x, t in zip(prs, tm): a(f"v_pk_fma_f32 {vr(t,2)}, {vr(t,2)}, s[32:33], v[18:19]")
            for x, t in zip(prs, tm): a(f"v_pk_mul_f32 {vr(t,2)}, {vr(t,2)}, {vr(x,2)}")
            for t in tm: a(f"v_exp_f32 v{t}, v{t}\nv_exp_f32 v{t+1}, v{t+1}")
            for x in prs: a(f"v_pk_mul_f32 {vr(x,2)}, {vr(x,2)}, {vr(T+6+2*p,2)} op_sel_hi:[1,0]")
            for t in tm: a(f"v_pk_add_f32 {vr(t,2)}, {vr(t,2)}, 1.0 op_sel_hi:[1,0]")
            for t in tm: a(f"v_rcp_f32 v{t}, v{t}\nv_rcp_f32 v{t+1}, v{t+1}")
            for x, t in zip(prs, tm): a(f"v_pk_mul_f32 {vr(x,2)}, {vr(x,2)}, {vr(t,2)}")
    def reads(F, kk):
        cx = CX0 if kk == 0 else CX1
        out = [f"ds_read_b128 {vr(F,4)}, v{cx}", f"ds_read_b128 {vr(F+8,4)}, v{CZ} offset:{kk*8192}", f"ds_read_b128 {vr(F+4,4)}, v{cx} offset:2048"]
        for n in range(1, 4): out.append(f"ds_read_b128 {vr(F+8+4*n,4)}, v{CZ} offset:{kk*8192 + n*1024}")
        return out
    def mf(F):
        out = []
        for n in range(4):
            for p in range(2):
                d = vr(ACC + (p*4+n)*4, 4)
                out.append(f"v_mfma_f32_16x16x32_bf16 {d}, {vr(F+8+4*n,4)}, {vr(F+4*p,4)}, {d}")
        return out
    def setaddr():
        return [f"v_add_u32 v{CX0}, s31, v{XA0}", f"v_add_u32 v{CX1}, s31, v{XA1}", f"v_add_u32 v{CZ}, s31, v{ZA}"]
    a("s_mov_b32 s31, 0\ns_barrier")
    stamp(a, 1, 2, 12, 20)
    for x in setaddr(): a(x)
    for x in reads(FX, 0): a(x)
    a("s_mov_b32 s30, 0\ns_waitcnt lgkmcnt(0)")
    a.label("k2_loop")
    interleave(a, mf(FX), reads(FY, 1))
    a(f"s_add_u32 s31, s31, {G_ST}\ns_cmp_eq_u32 s31, {G_ST*G_R}\ns_cselect_b32 s31, 0, s31\ns_add_u32 s30, s30, 1\ns_cmp_eq_u32 s30, 16\ns_waitcnt lgkmcnt(0)")
    a("s_cbranch_scc1 k2_loop_nb\ns_barrier")
    a.label("k2_loop_nb")
    for x in setaddr(): a(x)
    interleave(a, mf(FY), reads(FX, 0))
    a("s_waitcnt lgkmcnt(0)\ns_cbranch_scc0 k2_loop")
    stamp(a, 1, 1, 12, 20)
    for p in range(2):
        for m in range(2):
            b = (p*4+2*m)*4
            for q in range(4): a(f"v_pk_mul_f32 {vr(ACC+b+2*q,2)}, {vr(ACC+b+2*q,2)}, {vr(ZG+b+2*q,2)}")
            o = FX + (p*2+m)*4
            for q in range(4): a(f"v_cvt_pk_bf16_f32 v{o+q}, v{ACC+b+2*q}, v{ACC+b+2*q+1}")
            a(f"buffer_store_dwordx4 {vr(o,4)}, v4, s[12:15], s{34+p} offen offset:{m*2048}")
    stamp(a, 1, 4, 12, 20)
    a("s_endpgm")
    a.label("k2_load")
    srd(a, 4, 40, 2048*4096)
    a("s_sub_u32 s29, s20, 8")
    rowtile_voff(a, 8, 29, 12, 6, 7)
    a(f"""
    v_lshlrev_b32 v9, 4, v1
    s_lshl_b32 s32, s21, 19
    s_lshl_b32 s33, s27, 11
    s_add_u32 s32, s32, s33
    s_lshl_b32 s33, s27, 5
    s_lshr_b32 s34, s29, 1
    s_add_u32 s33, s33, s34
    s_mul_i32 s33, s33, 56
    s_lshl_b32 s34, s22, 3
    s_add_u32 s33, s33, s34
    s_and_b32 s34, s29, 1
    s_lshl_b32 s34, s34, 2
    s_add_u32 s33, s33, s34
    s_lshl_b32 s33, s33, 10
    s_add_u32 s33, s33, {Z2N}
    s_lshl_b32 s34, s29, 10
    s_lshl_b32 s54, s29, 12
    s_add_u32 s54, s54, 16384
    s_mov_b32 s31, 0
    """)
    def issue():
        a(f"""
        s_add_u32 s35, s30, s23
        s_and_b32 s35, s35, 15
        s_lshl_b32 s36, s35, 7
        s_add_u32 s36, s36, s32
        s_mul_i32 s37, s35, {2*56*1024}
        s_add_u32 s37, s37, s33
        s_add_u32 s38, s31, s34
        s_add_u32 m0, s31, s54
        s_add_u32 s31, s31, {G_ST}
        s_cmp_eq_u32 s31, {G_ST*G_R}
        s_cselect_b32 s31, 0, s31
        """)
        for n in range(4):
            a(f"buffer_load_dwordx4 v9, s[12:15], s37 offen offset:{n*1024} lds")
        for b in range(4):
            a(f"s_add_u32 m0, s38, {b*4096}\ns_add_u32 s39, s36, {b*32*4096}\nbuffer_load_dwordx4 v8, s[4:7], s39 offen lds")
    loader_loop(a, "k2", 16, G_R, 8, issue)
    a.label(K + "_end")
    a("s_endpgm")

def gen_k3(a):
    K = "k3_kernel"; a.kidx = 2
    a.kname = K
    kernel_begin(a, K)
    a("s_load_dwordx2 s[40:41], s[0:1], 16\ns_load_dwordx2 s[42:43], s[0:1], 56\ns_load_dwordx2 s[44:45], s[0:1], 72\ns_load_dwordx2 s[50:51], s[0:1], 88")
    common_entry(a, 256)
    a("""
    s_and_b32 s24, s2, 7
    s_lshr_b32 s25, s2, 3
    s_lshl_b32 s21, s24, 2
    s_and_b32 s26, s25, 3
    s_add_u32 s21, s21, s26
    s_lshr_b32 s22, s25, 2
    s_and_b32 s28, s20, 3
    s_lshr_b32 s29, s20, 2
    s_lshl_b32 s33, s21, 2
    s_add_u32 s33, s33, s28
    s_waitcnt lgkmcnt(0)
    """)
    srd(a, 4, 40, 512*1024)
    srd(a, 8, 42, 896*1024)
    srd(a, 12, 50, WS_SIZE)
    srd(a, 16, 44, 2048*1024)
    stamp(a, 2, 0, 12, 20)
    a(f"""
    v_lshrrev_b32 v7, 3, v1
    s_lshl_b32 s24, s20, 3
    v_add_u32 v7, s24, v7
    v_lshlrev_b32 v7, 10, v7
    v_bfe_u32 v9, v1, 1, 2
    v_xor_b32 v6, v3, v9
    v_and_b32 v9, 1, v1
    v_lshl_or_b32 v9, v6, 1, v9
    v_lshl_add_u32 v9, v9, 4, v7
    s_lshl_b32 s24, s22, 7
    v_add_u32 v9, s24, v9
    v_lshlrev_b32 v4, 4, v1
    s_lshl_b32 s34, s33, 14
    s_lshl_b32 s35, s29, 10
    s_add_u32 s34, s34, s35
    s_add_u32 s34, s34, {OB}
    s_mul_i32 s36, s33, {28*2048}
    s_lshl_b32 s35, s29, 11
    s_add_u32 s36, s36, s35
    s_add_u32 s36, s36, {HB}
    s_lshl_b32 s37, s20, 10
    s_and_b32 s38, s22, 3
    s_mov_b32 s39, s22
    s_cmp_eq_u32 s39, 7
    s_cselect_b32 s39, 0, s39
    """)
    HF = 40
    ACC = 20
    WF = 184
    def issue_w(c):
        slot = c % 10
        if c < 4:
            a(f"s_lshl_b32 s24, s38, 17")
            sr = "s[4:7]"
        else:
            a(f"s_lshl_b32 s24, s39, 17")
            sr = "s[8:11]"
        a(f"s_add_u32 m0, s37, {slot*16384}\ns_add_u32 s25, s24, 0x10000\nbuffer_load_dwordx4 v9, {sr}, s24 offen lds")
        a(f"s_add_u32 m0, s37, {slot*16384+8192}\ns_nop 0\nbuffer_load_dwordx4 v9, {sr}, s25 offen lds")
    def issue_h(c):
        if c < 4:
            a(f"s_lshl_b32 s24, s38, 12\ns_add_u32 s24, s24, s34")
            for u in range(2): a(f"buffer_load_dwordx4 {vr(HF+(2*c+u)*4,4)}, v4, s[12:15], s24 offen offset:{u*2048}")
        else:
            a(f"s_lshl_b32 s24, s39, 13\ns_add_u32 s24, s24, s36\ns_add_u32 s25, s24, 4096")
            for u in range(2):
                for hh in range(2):
                    a(f"buffer_load_dwordx4 {vr(HF+(8+(c-4)*4+u*2+hh)*4,4)}, v4, s[12:15], s{24+u} offen offset:{hh*1024}")
    def adv(c):
        if c < 4: a("s_add_u32 s38, s38, 1\ns_and_b32 s38, s38, 3")
        else: a("s_add_u32 s39, s39, 1\ns_cmp_eq_u32 s39, 7\ns_cselect_b32 s39, 0, s39")
    order = []
    for c in range(10):
        issue_w(c); issue_h(c); adv(c)
        order.append(2 + (2 if c < 4 else 4))
    issue_h(10)
    a(f"s_lshl_b32 s24, s33, 6\ns_add_u32 s24, s24, {GATE}\nv_lshlrev_b32 v7, 2, v2\nbuffer_load_dword v36, v7, s[12:15], s24 offen")
    total = sum(order) + 4 + 1
    WA = 10
    a(f"""
    v_lshrrev_b32 v7, 2, v2
    v_lshl_add_u32 v18, v3, 2, v7
    v_lshlrev_b32 v18, 7, v18
    v_and_b32 v19, 3, v2
    v_lshl_add_u32 v18, v19, 3, v18
    s_lshl_b32 s24, s29, 12
    v_add_u32 v18, s24, v18
    v_lshrrev_b32 v7, 3, v2
    v_and_b32 v19, 1, v3
    v_lshl_or_b32 v7, v19, 1, v7
    v_lshl_add_u32 v{WA}, v7, 5, v18
    v_xor_b32 v{WA+1}, 32, v{WA}
    v_xor_b32 v{WA+2}, 64, v{WA}
    v_xor_b32 v{WA+3}, 0x60, v{WA}
    """)
    for r in range(16): a(f"v_mov_b32 v{ACC+r}, 0")
    done = 0
    extra = 0
    for c in range(11):
        slot = c % 10
        if c < 10:
            done += order[c]
            if c == 0: tick(a)
            a(f"s_waitcnt vmcnt({total - done + extra})\ns_barrier")
        else:
            a("s_waitcnt vmcnt(0)\ns_barrier")
        tick(a)
        if c == 1:
            issue_w(10); extra = 2
        if slot in (4, 8):
            for q in range(4): a(f"v_add_u32 v{WA+q}, 0x10000, v{WA+q}")
        if c == 10:
            for q in range(4): a(f"v_subrev_u32 v{WA+q}, 0x20000, v{WA+q}")
        for u in range(2):
            for n in range(4):
                for h in range(2):
                    a(f"ds_read_b64_tr_b16 {vr(WF+u*16+4*n+2*h,2)}, v{WA+n} offset:{(slot&3)*16384 + u*8192 + h*2048}")
        if c == 4:
            pass
        for u in range(2):
            a(f"s_waitcnt lgkmcnt({8 if u == 0 else 0})")
            hs = [HF+(2*c+u)*4] if c < 4 else [HF+(8+(c-4)*4+u*2+hh)*4 for hh in range(2)]
            acc = ACC if c < 4 else 216
            for hreg in hs:
                for n in range(4):
                    d = vr(acc+4*n, 4)
                    first = (c == 4 and u == 0 and hreg == hs[0])
                    a(f"v_mfma_f32_16x16x32_bf16 {d}, {vr(WF+u*16+4*n,4)}, {vr(hreg,4)}, {'0' if first else d}")
    stamp(a, 2, 1, 12, 20)
    for r in range(16): a(f"v_fma_f32 v{ACC+r}, v{ACC+r}, v36, v{216+r}")
    a(f"""
    s_barrier
    s_lshl_b32 s24, s20, 11
    v_add_u32 v7, s24, v4
    s_xor_b32 s24, s24, 0x2000
    v_add_u32 v8, s24, v4
    s_cmp_eq_u32 s29, 0
    s_cbranch_scc1 k3_x0
    """)
    for r in range(8): a(f"v_swap_b32 v{ACC+r}, v{ACC+8+r}")
    a.label("k3_x0")
    a(f"""
    ds_write_b128 v7, {vr(ACC+8,4)}
    ds_write_b128 v7, {vr(ACC+12,4)} offset:1024
    s_waitcnt lgkmcnt(0)
    s_barrier
    ds_read_b128 {vr(ACC+8,4)}, v8
    ds_read_b128 {vr(ACC+12,4)}, v8 offset:1024
    s_lshr_b32 s24, s33, 1
    s_lshl_b32 s24, s24, 5
    s_and_b32 s25, s33, 1
    s_add_u32 s24, s24, s25
    s_lshl_b32 s24, s24, 10
    s_lshl_b32 s25, s22, 7
    s_add_u32 s24, s24, s25
    s_lshl_b32 s25, s29, 6
    s_add_u32 s24, s24, s25
    v_lshlrev_b32 v7, 11, v2
    v_and_b32 v8, 1, v3
    v_lshl_add_u32 v7, v8, 5, v7
    v_lshrrev_b32 v8, 1, v3
    v_lshl_add_u32 v7, v8, 4, v7
    s_waitcnt lgkmcnt(0)
    """)
    for q in range(4): a(f"v_pk_add_f32 {vr(ACC+2*q,2)}, {vr(ACC+2*q,2)}, {vr(ACC+8+2*q,2)}")
    for q in range(4): a(f"v_cvt_pk_bf16_f32 v{ACC+q}, v{ACC+2*q}, v{ACC+2*q+1}")
    a(f"v_permlane16_swap_b32 v{ACC}, v{ACC+2}\nv_permlane16_swap_b32 v{ACC+1}, v{ACC+3}")
    a(f"buffer_store_dwordx4 {vr(ACC,4)}, v7, s[16:19], s24 offen")
    stamp(a, 2, 4, 12, 20)
    a.label(K + "_end")
    a("s_endpgm")

def STAMP_GROUPS(wg):
    mlp = (wg >> 5) < 4; al = wg >= 0
    return [("z2", 0, mlp, slice(0,4)), ("z1", 0, mlp, slice(4,8)), ("mload", 0, mlp, slice(8,12)), ("attn", 0, ~mlp, slice(0,8)), ("aload", 0, ~mlp, slice(8,12)),
            ("k2c", 1, al, slice(0,8)), ("k2l", 1, al, slice(8,12)), ("k3", 2, al, slice(0,8))]

HEADER = open("gated_mix__sliding_local_dilated__mixer_gmlp__prompt.s.ref").read().split("; Override launch")[0]

def gen(stamps=False):
    global STAMPS, STV
    STAMPS = stamps
    a = Asm()
    for l in HEADER.strip().split("\n"): a.raw(l)
    a.raw(f"; @launch kernel=k1_kernel grid=(256,1,1) block=(768,1,1) lds={K1_LDS}")
    a.raw(f"; @launch kernel=k2_kernel grid=(224,1,1) block=(768,1,1) lds={G_ST*G_R}")
    a.raw(f"; @launch kernel=k3_kernel grid=(256,1,1) block=(512,1,1) lds=163840")
    a.raw('.amdgcn_target "amdgcn-amd-amdhsa--gfx950"')
    STV = 166; gen_k1(a)
    STV = 166; gen_k2(a)
    STV = 240; gen_k3(a)
    a.raw(kernel_desc("k1_kernel", 168))
    a.raw(kernel_desc("k2_kernel", 168))
    a.raw(kernel_desc("k3_kernel", 256))
    return a.text()

if __name__ == "__main__":
    out = sys.argv[1] if len(sys.argv) > 1 else "gated_mix__sliding_local_dilated__mixer_gmlp__prompt.s"
    open(out, "w").write(gen("--stamps" in sys.argv))
```

```python
import gen, asmlib, sys
def probe(A, B, name):
    s = gen.gen(True)
    lines = s.split("\n")
    idx = [i for i,l in enumerate(lines) if l.startswith("; @launch")]
    e = "; @launch kernel=rep_kernel grid=(1,1,1) block=(64,1,1) lds=0"
    lines = lines[:idx[-1]+1] + [e] + lines[idx[-1]+1:]
    t = "\n".join(lines)
    a = asmlib.Asm()
    asmlib.kernel_begin(a, "rep_kernel")
    a("s_cmp_ge_u32 s2, 1\ns_cbranch_scc1 rep_end\ns_load_dwordx4 s[4:7], s[0:1], 80\ns_memrealtime s[10:11]\ns_waitcnt lgkmcnt(0)")
    def off(x): k, wg, w, j = x; return gen.STMP + ((k*256+wg)*16+w)*256 + j*4
    a(f"v_mov_b32 v8, s10\nv_mov_b32 v9, s10")
    if A: a(f"v_mov_b32 v2, {off(A)}\nglobal_load_dword v8, v2, s[6:7]")
    if B: a(f"v_mov_b32 v2, {off(B)}\nglobal_load_dword v9, v2, s[6:7]")
    a("s_waitcnt vmcnt(0)\nv_sub_u32 v9, v9, v8\nv_min_u32 v9, 0x4000, v9\ns_nop 1\nv_readfirstlane_b32 s12, v9\ns_memrealtime s[10:11]\ns_waitcnt lgkmcnt(0)\ns_add_u32 s12, s12, s10")
    a("rep_spin:\ns_memrealtime s[14:15]\ns_waitcnt lgkmcnt(0)\ns_sub_u32 s16, s14, s12\ns_cmp_lt_i32 s16, 0\ns_cbranch_scc1 rep_spin")
    a("rep_end:\ns_endpgm")
    t += a.text() + asmlib.kernel_desc("rep_kernel", 32)
    open(name, "w").write(t)
if __name__ == "__main__":
    probe((0,0,0,0), (0,0,0,0), "p0.s")
    probe((0,0,0,0), (1,0,0,0), "p1.s")
    probe((1,0,0,0), (2,0,0,0), "p2.s")
    probe((2,0,0,0), None, "p3.s")
    probe((0,0,8,0), (0,0,8,1), "p4.s")
    probe((0,0,0,0), (0,0,0,4), "p5.s")
```

```python
import sys, struct
from asmlib import *

def f2u(x): return struct.unpack("<I", struct.pack("<f", x))[0]
def hx(x): return "0x%08x" % (x & 0xffffffff)

Z2N = 0x0000000
Z1  = 0x0380000
OB  = 0x0700000
HB  = 0x0900000
GATE= 0x1000000
MBOX= 0x1010000
STMP= 0x1060000
WS_SIZE = 0x1700000
LOG2E = 1.4426950408889634
GC1 = -2.0 * LOG2E * 0.7978845608028654
GC2 = GC1 * 0.044715

STAMPS = False
SPIN_SLEEP = 1
CODE_BYTES = 0x4000

def srd(a, d, b, size):
    a(f"s_mov_b32 s{d}, s{b}\ns_and_b32 s{d+1}, s{b+1}, 0xffff\ns_mov_b32 s{d+2}, {hx(size)}\ns_mov_b32 s{d+3}, 0x20000")

def vr(b, n): return f"v[{b}:{b+n-1}]"

def tick(a):
    if not STAMPS: return
    a(f"""
    s_memrealtime s[90:91]
    s_memtime s[94:95]
    s_mov_b32 m0, s93
    s_waitcnt lgkmcnt(0)
    v_writelane_b32 v{STV}, s90, m0
    v_writelane_b32 v{STV-1}, s94, m0
    s_cselect_b32 s92, 1, 0
    s_add_u32 s93, s93, 1
    s_cmp_eq_u32 s92, 1
    """)
def stamp(a, k, slot, wsrd, wave_s):
    if not STAMPS: return
    if slot == 0:
        a(f"s_mov_b32 s93, 0\nv_mov_b32 v{STV}, 0")
    tick(a)
    if slot == 4:
        a(f"""
        s_lshl_b32 s92, s2, 4
        s_add_u32 s92, s92, s{wave_s}
        s_lshl_b32 s92, s92, 8
        s_add_u32 s92, s92, {STMP + k*256*16*256}
        v_lshlrev_b32 v{STV+1}, 2, v1
        buffer_store_dword v{STV}, v{STV+1}, s[{wsrd}:{wsrd+3}], s92 offen
        s_add_u32 s92, s92, 0x300000
        buffer_store_dword v{STV-1}, v{STV+1}, s[{wsrd}:{wsrd+3}], s92 offen
        """)
STV = 166

def gelu_pairs(a, regs, tmp, c):
    pass

CTL = 0
def ctl_init(a, free_init=None):
    a(f"""
    s_add_u32 s24, s20, 4
    s_cmp_ge_u32 s20, 8
    s_cselect_b32 s25, 12, 0
    s_cselect_b32 s60, 7, 3
    s_cselect_b32 s61, 0x400, 0
    s_sub_u32 s24, s24, s25
    s_lshl_b32 s24, s24, 8
    s_add_u32 s24, s24, {CTL}
    v_lshlrev_b32 v{CFW}, 2, v1
    v_add_u32 v{CFW}, s24, v{CFW}
    v_mov_b32 v{CFV}, {free_init if free_init else 0}
    ds_write_b32 v{CFW}, v{CFV}
    s_add_u32 s61, s61, {CTL}
    v_and_b32 v{CFR}, s60, v1
    v_lshlrev_b32 v{CFR}, 8, v{CFR}
    v_add_u32 v{CFR}, s61, v{CFR}
    s_waitcnt lgkmcnt(0)
    s_barrier
    """)
CFW, CFR, CFV, CFF = 160, 161, 162, 163

def loader_loop(a, name, S, R, n, issue, tail_extra=None, extra_n=0, cnt="s30"):
    L = name + "_ld"
    a(f"s_setprio 3\ns_mov_b32 {cnt}, 0")
    a.label(L)
    issue()
    a(f"ds_read_b32 v{CFF}, v{CFR}")
    a(f"v_mov_b32 v{CFV}, {cnt}")
    a(f"s_add_u32 {cnt}, {cnt}, 1\ns_cmp_ge_u32 {cnt}, {S}\ns_cbranch_scc1 {L}_t")
    a(f"s_sub_u32 s55, {cnt}, {R-1}\ns_max_i32 s55, s55, 0")
    a(f"s_waitcnt vmcnt({n})\nds_write_b32 v{CFW}, v{CFV}")
    tick(a)
    a(f"s_waitcnt lgkmcnt(0)\nv_cmp_gt_u32 vcc, s55, v{CFF}\ns_cbranch_vccz {L}")
    a(f"v_mov_b32 v{CFV}, {cnt}\ns_waitcnt vmcnt(0)\nds_write_b32 v{CFW}, v{CFV}")
    a.label(L + "_s")
    a(f"s_sleep 1\nds_read_b32 v{CFF}, v{CFR}\ns_waitcnt lgkmcnt(0)\nv_cmp_gt_u32 vcc, s55, v{CFF}\ns_cbranch_vccnz {L}_s")
    a(f"s_branch {L}")
    a.label(L + "_t")
    a(f"s_waitcnt vmcnt({n})\nds_write_b32 v{CFW}, v{CFV}")
    tick(a)
    if tail_extra: tail_extra()
    a(f"v_mov_b32 v{CFV}, {S}\ns_waitcnt vmcnt({extra_n})\nds_write_b32 v{CFW}, v{CFV}")
    stamp(a, a.kidx, 4, 12, 20)

def wait_full(a, name, need, sleep=0):
    a.label(name)
    if sleep: a(f"s_sleep {sleep}")
    a(f"ds_read_b32 v{CFF}, v{CFR}\ns_waitcnt lgkmcnt(0)\nv_cmp_gt_u32 vcc, {need}, v{CFF}\ns_cbranch_vccnz {name}")

def cons_loop(a, name, s0, s1, ST, R, FX, FY, reads, mfma, setaddr, final_free=None):
    a(f"s_mov_b32 s31, {(s0 % R) * ST}\ns_mov_b32 s30, {s0+1}")
    for x in setaddr(): a(x)
    wait_full(a, name + "_w0", "s30", sleep=(2 if s0 else SPIN_SLEEP))
    tick(a)
    for x in reads(FX, 0): a(x)
    a("s_waitcnt lgkmcnt(0)")
    a.label(name)
    a(f"ds_read_b32 v{CFF}, v{CFR}\nv_mov_b32 v{CFV}, s30")
    interleave(a, mfma(FX), reads(FY, 1) + [f"ds_write_b32 v{CFW}, v{CFV}"])
    a(f"s_add_u32 s31, s31, {ST}\ns_cmp_eq_u32 s31, {ST*R}\ns_cselect_b32 s31, 0, s31")
    a(f"s_add_u32 s30, s30, 1\ns_cmp_eq_u32 s30, {s1+1}\ns_cselect_b32 s56, 0, s30")
    for x in setaddr(): a(x)
    a(f"s_waitcnt lgkmcnt(0)\nv_cmp_gt_u32 vcc, s56, v{CFF}\ns_cbranch_vccz {name}_g")
    wait_full(a, name + "_w", "s56", sleep=SPIN_SLEEP)
    a.label(name + "_g")
    tick(a)
    interleave(a, mfma(FY), reads(FX, 0))
    a(f"s_waitcnt lgkmcnt(0)\ns_cbranch_scc0 {name}")
    if final_free is not None:
        a(f"v_mov_b32 v{CFV}, {final_free}\nds_write_b32 v{CFW}, v{CFV}")

def rowtile_voff(a, dst, lw_s, stride_log, t1, t2):
    a(f"""
    s_and_b32 s24, s{lw_s}, 1
    s_lshr_b32 s25, s{lw_s}, 1
    s_lshl_b32 s26, s24, 4
    s_add_u32 s26, s26, s25
    v_lshrrev_b32 v{t1}, 3, v1
    v_lshlrev_b32 v{t1}, 1, v{t1}
    v_add_u32 v{t1}, s26, v{t1}
    v_lshlrev_b32 v{t1}, {stride_log}, v{t1}
    s_lshl_b32 s24, s24, 2
    v_lshrrev_b32 v{t2}, 4, v1
    v_add_u32 v{t2}, s24, v{t2}
    v_and_b32 v{dst}, 7, v1
    v_xor_b32 v{dst}, v{dst}, v{t2}
    v_lshl_add_u32 v{dst}, v{dst}, 4, v{t1}
    """)

def rowtile_raddr(a, dst0, dst1, t1):
    a(f"""
    v_lshrrev_b32 v{t1}, 1, v2
    v_xor_b32 v{t1}, v{t1}, v3
    v_lshlrev_b32 v{t1}, 4, v{t1}
    v_lshl_add_u32 v{dst0}, v2, 7, v{t1}
    v_xor_b32 v{dst1}, 64, v{dst0}
    """)

def interleave(a, mf, rd, per=None):
    mf = list(mf); rd = list(rd)
    n = len(mf)
    k = 0
    lim = max(1, n - 3)
    for idx, m in enumerate(mf):
        a(m)
        want = min(len(rd), -(-len(rd) * (idx + 1) // lim))
        while k < want:
            a(rd[k]); k += 1
    while k < len(rd):
        a(rd[k]); k += 1

def common_entry(a, nwg):
    a(f"""
    s_cmp_ge_u32 s2, {nwg}
    s_cbranch_scc1 {a.kname}_end
    v_lshrrev_b32 v4, 6, v0
    v_and_b32 v1, 63, v0
    v_and_b32 v2, 15, v0
    v_readfirstlane_b32 s20, v4
    v_lshrrev_b32 v3, 4, v1
    """)

A_XB = 20480; A_ST = 45056; A_R = 3
M_XB = 16384; M_ST = 32768; M_R = 4
K1_CTL = A_ST * A_R
K1_LDS = K1_CTL + 3072 + 64
NONCE_LDS = K1_CTL + 3072
STF = "sc0 sc1"

def code_prefetch(a, wave, vt):
    L = a.newlabel("cpf")
    a(f"""
    s_cmp_lg_u32 s20, {wave}
    s_cbranch_scc1 {L}
    s_getpc_b64 s[58:59]
    s_and_b32 s58, s58, 0xffffff00
    s_lshr_b32 s24, s2, 3
    s_lshl_b32 s24, s24, 10
    v_lshlrev_b32 v{vt}, 7, v1
    v_add_u32 v{vt}, s24, v{vt}
    v_min_u32 v{vt}, {hx(CODE_BYTES)}, v{vt}
    s_mov_b64 exec, 0xff
    global_load_dword v{vt}, v{vt}, s[58:59]
    s_mov_b64 exec, -1
    """)
    a.label(L)

def gen_k1(a):
    global CTL
    CTL = K1_CTL
    K = "k1_kernel"; a.kidx = 0
    a.kname = K
    kernel_begin(a, K)
    a("s_load_dwordx4 s[40:43], s[0:1], 0\ns_load_dwordx2 s[44:45], s[0:1], 32\ns_load_dwordx4 s[48:51], s[0:1], 80")
    common_entry(a, 256)
    a("""
    s_and_b32 s24, s2, 7
    s_lshr_b32 s25, s2, 3
    s_lshr_b32 s21, s24, 1
    s_lshl_b32 s21, s21, 2
    s_and_b32 s26, s25, 3
    s_add_u32 s21, s21, s26
    s_lshr_b32 s27, s25, 2
    s_and_b32 s22, s24, 1
    s_lshl_b32 s22, s22, 2
    s_and_b32 s28, s27, 3
    s_add_u32 s22, s22, s28
    s_lshl_b32 s23, s26, 1
    s_add_u32 s23, s23, s27
    s_and_b32 s23, s23, 7
    """)
    code_prefetch(a, 7, 164)
    a(f"""
    s_lshr_b32 s24, s20, 2
    s_cmp_eq_u32 s24, 1
    s_cselect_b32 s57, 8, 0
    s_cmp_ge_u32 s27, 4
    s_cselect_b32 s57, 0, s57
    v_mov_b32 v5, {NONCE_LDS}
    v_mov_b32 v6, 0
    ds_write_b32 v5, v6
    """)
    ctl_init(a, "s57")
    srd(a, 4, 40, 2048*1024)
    srd(a, 12, 50, WS_SIZE)
    stamp(a, 0, 0, 12, 20)
    a(f"s_cmp_ge_u32 s27, 4\ns_cbranch_scc1 k1_attn")
    srd(a, 8, 44, 512*3584)
    a("s_cmp_ge_u32 s20, 8\ns_cbranch_scc1 k1_mload")
    XA0, XA1, WA = 5, 6, 8
    CX0, CX1, CW = 12, 13, 14
    ACC = 20
    FX = 76; FY = 112
    a("s_and_b32 s29, s20, 3")
    rowtile_raddr(a, XA0, XA1, 7)
    a(f"""
    s_lshl_b32 s24, s29, 12
    v_add_u32 v{XA0}, s24, v{XA0}
    v_add_u32 v{XA1}, s24, v{XA1}
    v_lshrrev_b32 v7, 2, v2
    v_lshl_add_u32 v18, v3, 3, v7
    v_lshlrev_b32 v18, 7, v18
    v_and_b32 v19, 3, v2
    v_lshl_add_u32 v18, v19, 3, v18
    v_add_u32 v18, {M_XB}, v18
    v_lshrrev_b32 v7, 3, v2
    v_and_b32 v19, 1, v3
    v_lshl_or_b32 v7, v19, 1, v7
    v_lshl_add_u32 v{WA}, v7, 5, v18
    v_xor_b32 v{WA+1}, 32, v{WA}
    v_xor_b32 v{WA+2}, 64, v{WA}
    v_xor_b32 v{WA+3}, 0x60, v{WA}
    """)
    for r in range(56): a(f"v_mov_b32 v{ACC+r}, 0")
    def m_reads(F, kk):
        out = []
        cx = CX0 if kk == 0 else CX1
        for p in range(2): out.append(f"ds_read_b128 {vr(F+4*p,4)}, v{cx} offset:{p*2048}")
        for n in range(7):
            for h in range(2):
                out.append(f"ds_read_b64_tr_b16 {vr(F+8+4*n+2*h,2)}, v{CW+(n&3)} offset:{(n>>2)*8192 + kk*4096 + h*512}")
        return out
    def m_mfma(F, swap):
        out = []
        for n in range(7):
            for p in range(2):
                d = vr(ACC + (p*7+n)*4, 4); x = vr(F+4*p, 4); w = vr(F+8+4*n, 4)
                out.append(f"v_mfma_f32_16x16x32_bf16 {d}, {w if swap else x}, {x if swap else w}, {d}")
        return out
    def m_setaddr():
        return [f"v_add_u32 v{CX0}, s31, v{XA0}", f"v_add_u32 v{CX1}, s31, v{XA1}"] + [f"v_add_u32 v{CW+q}, s31, v{WA+q}" for q in range(4)]
    a("s_cmp_ge_u32 s20, 4\ns_cbranch_scc1 k1_z1")
    a("s_setprio 2")
    cons_loop(a, "k1_z2loop", 0, 8, M_ST, M_R, FX, FY, m_reads, lambda F: m_mfma(F, False), m_setaddr, final_free=64)
    stamp(a, 0, 1, 12, 20)
    a(f"s_mov_b32 s32, {hx(f2u(GC2))}\ns_mov_b32 s33, {hx(f2u(GC2))}\nv_mov_b32 v18, {hx(f2u(GC1))}\nv_mov_b32 v19, {hx(f2u(GC1))}")
    T = FX
    SUM = 148; SQ = 156
    def gelu_tile_pair(n):
        prs = [ACC + (p*7+n)*4 + 2*q for p in range(2) for q in range(2)]
        tm = [T + 2*k for k in range(4)]
        for x, t in zip(prs, tm): a(f"v_pk_mul_f32 {vr(t,2)}, {vr(x,2)}, {vr(x,2)}")
        for x, t in zip(prs, tm): a(f"v_pk_fma_f32 {vr(t,2)}, {vr(t,2)}, s[32:33], v[18:19]")
        for x, t in zip(prs, tm): a(f"v_pk_mul_f32 {vr(t,2)}, {vr(t,2)}, {vr(x,2)}")
        for t in tm: a(f"v_exp_f32 v{t}, v{t}\nv_exp_f32 v{t+1}, v{t+1}")
        for t in tm: a(f"v_pk_add_f32 {vr(t,2)}, {vr(t,2)}, 1.0 op_sel_hi:[1,0]")
        for t in tm: a(f"v_rcp_f32 v{t}, v{t}\nv_rcp_f32 v{t+1}, v{t+1}")
        for x, t in zip(prs, tm): a(f"v_pk_mul_f32 {vr(x,2)}, {vr(x,2)}, {vr(t,2)}")
        for k, x in enumerate(prs):
            if n == 0:
                a(f"v_pk_mul_f32 {vr(SQ+2*k,2)}, {vr(x,2)}, {vr(x,2)}")
            else:
                a(f"v_pk_fma_f32 {vr(SQ+2*k,2)}, {vr(x,2)}, {vr(x,2)}, {vr(SQ+2*k,2)}")
                if n == 1: a(f"v_pk_add_f32 {vr(SUM+2*k,2)}, {vr(x,2)}, {vr(x-4,2)}")
                else: a(f"v_pk_add_f32 {vr(SUM+2*k,2)}, {vr(x,2)}, {vr(SUM+2*k,2)}")
    for n in range(7): gelu_tile_pair(n)
    DP = "row_mask:0xf"
    for base in (SUM, SQ):
        for p in range(2):
            for r in range(2):
                lo, hi = base+p*4+r, base+p*4+r+2
                a(f"v_add_f32_dpp v{lo}, v{lo}, v{lo} row_ror:8 {DP} bank_mask:0x3")
                a(f"v_add_f32_dpp v{lo}, v{hi}, v{hi} row_ror:8 {DP} bank_mask:0xc")
    for base in (SUM, SQ):
        for p in range(2):
            lo, hi = base+p*4, base+p*4+1
            a(f"v_add_f32_dpp v{lo}, v{lo}, v{lo} row_shl:4 {DP} bank_mask:0x5")
            a(f"v_add_f32_dpp v{lo}, v{hi}, v{hi} row_shr:4 {DP} bank_mask:0xa")
    for qp in ("[1,0,3,2]", "[2,3,0,1]"):
        for base in (SUM, SQ):
            for p in range(2):
                lo = base+p*4
                a(f"v_add_f32_dpp v{lo}, v{lo}, v{lo} quad_perm:{qp} {DP} bank_mask:0xf")
    a(f"""
    v_mov_b32 v5, {NONCE_LDS}
    v_and_b32 v7, 1, v2
    v_cmp_eq_u32 vcc, 1, v7
    v_lshrrev_b32 v4, 2, v2
    v_lshl_add_u32 v4, v4, 1, v7
    v_lshl_add_u32 v4, v3, 3, v4
    v_lshlrev_b32 v4, 4, v4
    v_cndmask_b32 v{T}, v{SUM}, v{SUM+4}, vcc
    v_cndmask_b32 v{T+1}, v{SQ}, v{SQ+4}, vcc
    s_lshl_b32 s34, s21, 2
    s_add_u32 s34, s34, s29
    s_lshl_b32 s34, s34, 12
    s_add_u32 s34, s34, {MBOX}
    s_lshl_b32 s35, s22, 9
    s_add_u32 s35, s35, s34
    s_mov_b32 s36, 0x33333333
    s_mov_b32 s37, 0x33333333
k1_nonce:
    ds_read_b64 {vr(T+2,2)}, v5
    s_waitcnt lgkmcnt(0)
    v_cmp_eq_u32 vcc, 0, v{T+2}
    s_cbranch_vccnz k1_nonce
    s_mov_b64 exec, s[36:37]
    buffer_store_dwordx4 {vr(T,4)}, v4, s[12:15], s35 offen sc0 sc1
    s_mov_b64 exec, -1
    v_readfirstlane_b32 s38, v{T+2}
    v_readfirstlane_b32 s39, v{T+3}
    s_setprio 0
    """)
    stamp(a, 0, 2, 12, 20)
    a(f"""
    v_and_b32 v4, 7, v2
    v_lshl_add_u32 v4, v3, 3, v4
    v_lshlrev_b32 v4, 4, v4
    v_lshrrev_b32 v7, 3, v2
    v_lshl_add_u32 v4, v7, 9, v4
    """)
    a("s_mov_b32 s30, 0")
    a.label("k1_poll")
    P = T + 8
    for j in range(4): a(f"buffer_load_dwordx4 {vr(P+4*j,4)}, v4, s[12:15], s34 offen offset:{j*1024} sc0 sc1")
    a("s_waitcnt vmcnt(0)")
    a(f"v_xor_b32 v7, s38, v{P+2}\nv_xor_b32 v5, s39, v{P+3}\nv_or_b32 v7, v7, v5")
    for j in range(1, 4):
        a(f"v_xor_b32 v5, s38, v{P+4*j+2}\nv_xor_b32 v6, s39, v{P+4*j+3}\nv_or3_b32 v7, v7, v5, v6")
    a("v_cmp_ne_u32 vcc, 0, v7\ns_add_u32 s30, s30, 1\ns_cmp_gt_u32 s30, 0x40000\ns_cbranch_scc1 k1_pollx\ns_cbranch_vccnz k1_poll")
    a.label("k1_pollx")
    stamp(a, 0, 3, 12, 20)
    a(f"""
    v_pk_add_f32 {vr(P,2)}, {vr(P,2)}, {vr(P+4,2)}
    v_pk_add_f32 {vr(P+8,2)}, {vr(P+8,2)}, {vr(P+12,2)}
    v_pk_add_f32 {vr(P,2)}, {vr(P,2)}, {vr(P+8,2)}
    v_add_f32_dpp v{P}, v{P}, v{P} row_ror:8 {DP} bank_mask:0xf
    v_add_f32_dpp v{P+1}, v{P+1}, v{P+1} row_ror:8 {DP} bank_mask:0xf
    v_mul_f32 v{P}, {hx(f2u(1.0/896))}, v{P}
    v_mul_f32 v{P+1}, {hx(f2u(1.0/896))}, v{P+1}
    v_fma_f32 v{P+1}, -v{P}, v{P}, v{P+1}
    v_max_f32 v{P+1}, 0, v{P+1}
    v_add_f32 v{P+1}, {hx(f2u(1e-5))}, v{P+1}
    v_rsq_f32 v{P+1}, v{P+1}
    v_mul_f32 v{P}, v{P}, v{P+1}
    v_sub_f32 v{P}, 0, v{P}
    """)
    for p in range(2):
        for r in range(4):
            a(f"v_mov_b32_dpp v{SQ+p*4+r}, v{P+1} row_newbcast:{2*r+p} {DP} bank_mask:0xf")
            a(f"v_mov_b32_dpp v{SUM+p*4+r}, v{P} row_newbcast:{2*r+p} {DP} bank_mask:0xf")
    a(f"""
    s_lshl_b32 s34, s21, 2
    s_add_u32 s34, s34, s29
    s_mul_i32 s34, s34, 56
    s_mul_i32 s35, s22, 7
    s_add_u32 s34, s34, s35
    s_lshl_b32 s34, s34, 10
    s_add_u32 s34, s34, {Z2N}
    s_add_u32 s35, s34, 4096
    v_lshlrev_b32 v4, 4, v1
    """)
    for n in range(7):
        for p in range(2):
            for q in range(2):
                x = ACC + (p*7+n)*4 + 2*q
                a(f"v_pk_fma_f32 {vr(x,2)}, {vr(x,2)}, {vr(SQ+p*4+2*q,2)}, {vr(SUM+p*4+2*q,2)}")
        o = FY + 4*n
        for r in range(4): a(f"v_cvt_pk_bf16_f32 v{o+r}, v{ACC+n*4+r}, v{ACC+(7+n)*4+r}")
        a(f"buffer_store_dwordx4 {vr(o,4)}, v4, s[12:15], s{34 + (n>>2)} offen offset:{(n&3)*1024} {STF}")
    stamp(a, 0, 4, 12, 20)
    a("s_endpgm")
    a.label("k1_z1")
    a("s_cmp_lg_u32 s20, 4\ns_cbranch_scc1 k1_z1w")
    a(f"""
    s_memrealtime s[36:37]
    s_lshl_b32 s38, s21, 4
    v_mov_b32 v7, s38
    v_mov_b32 v{FX+2}, 0
    v_mov_b32 v{FX+3}, 0
    s_waitcnt lgkmcnt(0)
    s_or_b32 s36, s36, 1
    v_mov_b32 v{FX}, s36
    v_mov_b32 v{FX+1}, s37
    s_mov_b64 exec, 1
    global_atomic_cmpswap_x2 {vr(FX+4,2)}, v7, {vr(FX,4)}, s[48:49] sc0 sc1
    """)
    a(f"""
    s_waitcnt vmcnt(0)
    v_cmp_eq_u32 vcc, 0, v{FX+4}
    v_mov_b32 v7, {NONCE_LDS}
    v_cndmask_b32 v{FX+4}, v{FX+4}, v{FX}, vcc
    v_cndmask_b32 v{FX+5}, v{FX+5}, v{FX+1}, vcc
    ds_write_b64 v7, {vr(FX+4,2)}
    s_mov_b64 exec, -1
    """)
    a.label("k1_z1w")
    cons_loop(a, "k1_z1loop", 8, 16, M_ST, M_R, FX, FY, m_reads, lambda F: m_mfma(F, True), m_setaddr)
    stamp(a, 0, 1, 12, 20)
    a(f"""
    s_lshl_b32 s34, s21, 3
    s_lshl_b32 s35, s29, 1
    s_add_u32 s34, s34, s35
    s_mul_i32 s34, s34, 28
    s_mul_i32 s35, s22, 7
    s_lshr_b32 s35, s35, 1
    s_add_u32 s34, s34, s35
    s_lshl_b32 s34, s34, 10
    s_add_u32 s34, s34, {Z1}
    s_add_u32 s35, s34, {28*1024}
    v_lshlrev_b32 v4, 4, v1
    """)
    for p in range(2):
        for n in range(7):
            x = ACC + (p*7+n)*4; o = FX + p*16 + 2*n
            a(f"v_cvt_pk_bf16_f32 v{o}, v{x}, v{x+1}\nv_cvt_pk_bf16_f32 v{o+1}, v{x+2}, v{x+3}")
    a("s_bitcmp1_b32 s22, 0\ns_cbranch_scc1 k1_z1odd")
    for p in range(2):
        o = FX + p*16
        for m in range(3): a(f"buffer_store_dwordx4 {vr(o+4*m,4)}, v4, s[12:15], s{34+p} offen offset:{m*1024} {STF}")
        a(f"buffer_store_dwordx2 {vr(o+12,2)}, v4, s[12:15], s{34+p} offen offset:{3*1024} {STF}")
    stamp(a, 0, 4, 12, 20)
    a("s_endpgm")
    a.label("k1_z1odd")
    for p in range(2):
        o = FX + p*16
        a(f"buffer_store_dwordx2 {vr(o,2)}, v4, s[12:15], s{34+p} offen offset:8 {STF}")
        for m in range(3): a(f"buffer_store_dwordx4 {vr(o+2+4*m,4)}, v4, s[12:15], s{34+p} offen offset:{(m+1)*1024} {STF}")
    stamp(a, 0, 4, 12, 20)
    a("s_endpgm")
    def w_voff(stride):
        a(f"""
        v_lshrrev_b32 v7, 3, v1
        s_lshl_b32 s24, s29, 3
        v_add_u32 v7, s24, v7
        s_movk_i32 s24, {stride}
        v_mul_lo_u32 v7, v7, s24
        v_bfe_u32 v6, v1, 4, 1
        s_and_b32 s24, s29, 1
        s_lshl_b32 s24, s24, 1
        v_or_b32 v6, s24, v6
        v_bfe_u32 v9, v1, 1, 2
        v_xor_b32 v6, v6, v9
        v_and_b32 v9, 1, v1
        v_lshl_or_b32 v9, v6, 1, v9
        v_lshl_add_u32 v9, v9, 4, v7
        """)
    a.label("k1_mload")
    a("s_sub_u32 s29, s20, 8")
    rowtile_voff(a, 8, 29, 10, 6, 7)
    w_voff(3584)
    a(f"""
    v_cmp_eq_u32 vcc, 3, v6
    v_bfrev_b32 v7, 1
    s_lshl_b32 s32, s21, 17
    s_mul_i32 s33, s22, 224
    s_lshl_b32 s34, s29, 10
    v_cndmask_b32 v10, v9, v7, vcc
    """)
    def m_issue():
        a(f"""
        s_add_u32 s35, s30, s23
        s_and_b32 s35, s35, 7
        s_lshl_b32 s36, s35, 7
        s_add_u32 s36, s36, s32
        s_mul_i32 s37, s35, {64*3584}
        s_add_u32 s37, s37, s33
        s_cmp_lt_u32 s30, 8
        s_cselect_b32 s38, 1792, 0
        s_add_u32 s37, s37, s38
        s_and_b32 s38, s30, {M_R-1}
        s_lshl_b32 s38, s38, 15
        s_add_u32 s38, s38, s34
        """)
        for b in range(4):
            a(f"s_add_u32 m0, s38, {b*4096}\ns_add_u32 s39, s36, {b*32768}\nbuffer_load_dwordx4 v8, s[4:7], s39 offen lds")
        for gq in range(2):
            for hi in range(2):
                a(f"s_add_u32 m0, s38, {M_XB + gq*8192 + hi*4096}\ns_add_u32 s39, s37, {hi*32*3584 + gq*128}\nbuffer_load_dwordx4 v{9+gq}, s[8:11], s39 offen lds")
    loader_loop(a, "k1m", 16, M_R, 8, m_issue)
    a("s_endpgm")

    a.label("k1_attn")
    srd(a, 8, 42, 512*3072)
    a("s_cmp_ge_u32 s20, 8\ns_cbranch_scc1 k1_aload")
    a(f"""
    s_load_dwordx2 s[46:47], s[0:1], 64
    s_lshl_b32 s24, s21, 7
    s_lshl_b32 s25, s22, 4
    s_add_u32 s24, s24, s25
    s_lshl_b32 s25, s20, 1
    s_add_u32 s24, s24, s25
    s_lshl_b32 s25, s24, 10
    v_lshlrev_b32 v4, 4, v1
    buffer_load_dwordx4 v[76:79], v4, s[4:7], s25 offen
    buffer_load_dwordx4 v[80:83], v4, s[4:7], s25 offen offset:1024
    s_waitcnt lgkmcnt(0)
    global_load_dwordx4 v[84:87], v4, s[46:47]
    """)
    XA0, XA1, WA = 5, 6, 8
    CX0, CX1, CW = 12, 13, 14
    QA = 20; KA = 36; VA = 56
    FX = 76; FY = 108
    a("s_lshr_b32 s28, s20, 1\ns_and_b32 s29, s20, 1")
    rowtile_raddr(a, XA0, XA1, 7)
    a(f"""
    s_lshl_b32 s26, s29, 11
    v_add_u32 v{XA0}, s26, v{XA0}
    v_add_u32 v{XA1}, s26, v{XA1}
    v_lshrrev_b32 v7, 2, v2
    v_lshl_add_u32 v18, v3, 3, v7
    v_lshlrev_b32 v18, 7, v18
    v_and_b32 v19, 3, v2
    v_lshl_add_u32 v18, v19, 3, v18
    v_add_u32 v18, {A_XB}, v18
    v_lshrrev_b32 v7, 3, v2
    v_and_b32 v19, 1, v3
    v_lshl_or_b32 v7, v19, 1, v7
    v_xor_b32 v7, s28, v7
    v_lshl_add_u32 v{WA}, v7, 5, v18
    """)
    for r in range(56): a(f"v_mov_b32 v{QA+r}, 0")
    MC, MP, MP0, AC, AP, ONE = 140, 144, 148, 152, 154, 156
    a(f"v_lshlrev_b32 v7, 2, v3\nv_sub_u32 v7, v2, v7\nv_mov_b32 v18, {hx(f2u(-1e30))}\ns_cmp_eq_u32 s21, 0\ns_cselect_b64 s[36:37], 0, -1")
    for r in range(4):
        a(f"""
        v_subrev_u32 v19, {r}, v7
        v_cmp_gt_u32 vcc, 8, v19
        v_cmp_gt_i32 s[38:39], -8, v19
        v_cndmask_b32 v{MC+r}, v18, 0, vcc
        v_cndmask_b32 v{MP+r}, v18, 0, s[38:39]
        v_cndmask_b32 v{MP0+r}, v18, v{MP+r}, s[36:37]
        v_cndmask_b32 v19, 0, -1, vcc
        """)
        if r % 2 == 0: a(f"v_and_b32 v{AC+r//2}, 0xffff, v19")
        else: a(f"v_and_b32 v19, 0xffff0000, v19\nv_or_b32 v{AC+r//2}, v{AC+r//2}, v19")
        a(f"v_mov_b32 v{ONE+r}, 0x3f803f80")
    a(f"v_not_b32 v{AP}, v{AC}\nv_not_b32 v{AP+1}, v{AC+1}")
    a("v_mov_b32 v88, 0\nv_mov_b32 v89, 0\ns_waitcnt vmcnt(0)")
    for q in range(4):
        a(f"v_dot2c_f32_bf16 v88, v{76+q}, v{84+q}\nv_dot2c_f32_bf16 v89, v{80+q}, v{84+q}")
    for sh in (8, 4, 2, 1):
        a(f"v_add_f32_dpp v88, v88, v88 row_ror:{sh} {DP} bank_mask:0xf\nv_add_f32_dpp v89, v89, v89 row_ror:{sh} {DP} bank_mask:0xf")
    for sw in ("v_permlane16_swap_b32", "v_permlane32_swap_b32"):
        a(f"v_mov_b32 v90, v88\nv_mov_b32 v91, v89\n{sw} v88, v90\n{sw} v89, v91\nv_add_f32 v88, v88, v90\nv_add_f32 v89, v89, v91")
    a(f"""
    v_cmp_eq_u32 vcc, 1, v1
    s_and_b32 s25, s24, 31
    s_lshr_b32 s25, s25, 1
    s_andn2_b32 s24, s24, 31
    s_add_u32 s24, s24, s25
    s_lshl_b32 s24, s24, 2
    s_add_u32 s24, s24, {GATE}
    v_cndmask_b32 v88, v88, v89, vcc
    v_mul_f32 v88, {hx(f2u(-LOG2E))}, v88
    v_exp_f32 v88, v88
    v_lshlrev_b32 v4, 6, v1
    v_add_f32 v88, 1.0, v88
    v_rcp_f32 v88, v88
    s_mov_b64 exec, 3
    buffer_store_dword v88, v4, s[12:15], s24 offen {STF}
    s_mov_b64 exec, -1
    """)
    def a_reads(F, kk):
        out = []
        cx = CX0 if kk == 0 else CX1
        for gq in (1, 2, 0):
            for h in range(2):
                out.append(f"ds_read_b64_tr_b16 {vr(F+20+4*gq+2*h,2)}, v{CW} offset:{gq*8192 + kk*4096 + h*512}")
        for b in range(5): out.append(f"ds_read_b128 {vr(F+4*b,4)}, v{cx} offset:{b*4096}")
        return out
    def a_mfma(F):
        out = []
        for b in range(5):
            x = vr(F+4*b, 4)
            out.append(f"v_mfma_f32_16x16x32_bf16 {vr(KA+4*b,4)}, {vr(F+24,4)}, {x}, {vr(KA+4*b,4)}")
            out.append(f"v_mfma_f32_16x16x32_bf16 {vr(VA+4*b,4)}, {x}, {vr(F+28,4)}, {vr(VA+4*b,4)}")
            if b: out.append(f"v_mfma_f32_16x16x32_bf16 {vr(QA+4*(b-1),4)}, {vr(F+20,4)}, {x}, {vr(QA+4*(b-1),4)}")
        return out
    def a_setaddr():
        return [f"v_add_u32 v{CX0}, s31, v{XA0}", f"v_add_u32 v{CX1}, s31, v{XA1}", f"v_add_u32 v{CW}, s31, v{WA}"]
    cons_loop(a, "k1_aloop", 0, 8, A_ST, A_R, FX, FY, a_reads, a_mfma, a_setaddr)
    stamp(a, 0, 1, 12, 20)
    QP, KP, VP = 76, 84, 94
    for b in range(5):
        for (src, dst) in ((KA+4*b, KP+2*b), (VA+4*b, VP+2*b)) + (((QA+4*(b-1), QP+2*(b-1)),) if b else ()):
            a(f"v_cvt_pk_bf16_f32 v{dst}, v{src}, v{src+1}\nv_cvt_pk_bf16_f32 v{dst+1}, v{src+2}, v{src+3}")
    SC, SP = 20, 36
    for j in range(1, 5):
        q = vr(QP+2*(j-1), 2)
        a(f"v_mfma_f32_16x16x16_bf16 {vr(SC+4*(j-1),4)}, {vr(KP+2*j,2)}, {q}, {vr(MC,4)}")
        a(f"v_mfma_f32_16x16x16_bf16 {vr(SP+4*(j-1),4)}, {vr(KP+2*(j-1),2)}, {q}, {vr(MP0 if j == 1 else MP,4)}")
    MX = 52; MT = 56; PB = 104; OA = 60; LA = 120
    cs = 0.25 * LOG2E
    a(f"s_mov_b32 s32, {hx(f2u(cs))}")
    for j in range(4):
        for r in range(4): a(f"v_max_f32 v{SC+4*j+r}, v{SC+4*j+r}, v{SP+4*j+r}")
    for j in range(4): a(f"v_max3_f32 v{MX+j}, v{SC+4*j}, v{SC+4*j+1}, v{SC+4*j+2}")
    for j in range(4): a(f"v_max_f32 v{MX+j}, v{MX+j}, v{SC+4*j+3}")
    for sw in ("v_permlane16_swap_b32", "v_permlane32_swap_b32"):
        for j in range(4): a(f"v_mov_b32 v{MT+j}, v{MX+j}")
        for j in range(4): a(f"{sw} v{MX+j}, v{MT+j}")
        for j in range(4): a(f"v_max_f32 v{MX+j}, v{MX+j}, v{MT+j}")
    for j in range(4): a(f"v_mul_f32 v{MX+j}, s32, v{MX+j}")
    for j in range(4):
        for r in range(4): a(f"v_fma_f32 v{SC+4*j+r}, v{SC+4*j+r}, s32, -v{MX+j}")
    for j in range(4):
        for r in range(4): a(f"v_exp_f32 v{SC+4*j+r}, v{SC+4*j+r}")
    for j in range(4):
        a(f"v_cvt_pk_bf16_f32 v{SP+2*j}, v{SC+4*j}, v{SC+4*j+1}\nv_cvt_pk_bf16_f32 v{SP+2*j+1}, v{SC+4*j+2}, v{SC+4*j+3}")
    for j in range(4):
        for q in range(2):
            a(f"v_and_b32 v{PB+4*j+q}, v{AP+q}, v{SP+2*j+q}\nv_and_b32 v{PB+4*j+2+q}, v{AC+q}, v{SP+2*j+q}")
    for j in range(4):
        a(f"v_mfma_f32_16x16x32_bf16 {vr(LA+4*j,4)}, {vr(ONE,4)}, {vr(PB+4*j,4)}, 0")
        a(f"v_mfma_f32_16x16x32_bf16 {vr(OA+4*j,4)}, {vr(VP+2*j,4)}, {vr(PB+4*j,4)}, 0")
    a(f"""
    s_lshl_b32 s34, s21, 3
    s_add_u32 s34, s34, s29
    s_lshl_b32 s34, s34, 4
    s_lshl_b32 s35, s22, 1
    s_add_u32 s34, s34, s35
    s_lshr_b32 s35, s28, 1
    s_add_u32 s34, s34, s35
    s_lshl_b32 s34, s34, 10
    s_and_b32 s35, s28, 1
    s_lshl_b32 s35, s35, 3
    s_add_u32 s34, s34, s35
    s_add_u32 s34, s34, {OB}
    v_lshlrev_b32 v4, 4, v1
    """)
    for j in range(4): a(f"v_rcp_f32 v{LA+4*j}, v{LA+4*j}")
    for j in range(4):
        for r in range(4): a(f"v_mul_f32 v{OA+4*j+r}, v{OA+4*j+r}, v{LA+4*j}")
        a(f"v_cvt_pk_bf16_f32 v{OA+4*j}, v{OA+4*j}, v{OA+4*j+1}\nv_cvt_pk_bf16_f32 v{OA+4*j+1}, v{OA+4*j+2}, v{OA+4*j+3}")
        a(f"buffer_store_dwordx2 {vr(OA+4*j,2)}, v4, s[12:15], s34 offen {STF}")
        if j < 3: a(f"s_add_u32 s34, s34, {2*16*1024}")
    stamp(a, 0, 4, 12, 20)
    a("s_endpgm")
    a.label("k1_aload")
    a("s_load_dwordx2 s[44:45], s[0:1], 40\ns_load_dwordx2 s[46:47], s[0:1], 16\ns_load_dwordx2 s[52:53], s[0:1], 56")
    a("s_sub_u32 s29, s20, 8")
    rowtile_voff(a, 8, 29, 10, 6, 7)
    w_voff(3072)
    a(f"""
    s_lshl_b32 s32, s21, 17
    s_sub_u32 s33, s32, 32768
    s_max_i32 s33, s33, 0
    s_lshl_b32 s54, s22, 7
    s_lshl_b32 s34, s29, 10
    s_mov_b32 s31, 0
    """)
    def a_issue():
        a(f"""
        s_add_u32 s35, s30, s23
        s_and_b32 s35, s35, 7
        s_lshl_b32 s36, s35, 7
        s_mul_i32 s37, s35, {64*3072}
        s_add_u32 s37, s37, s54
        s_add_u32 s38, s31, s34
        s_add_u32 s31, s31, {A_ST}
        s_cmp_eq_u32 s31, {A_ST*A_R}
        s_cselect_b32 s31, 0, s31
        s_mov_b32 m0, s38
        s_add_u32 s39, s36, s33
        buffer_load_dwordx4 v8, s[4:7], s39 offen lds
        s_add_u32 s36, s36, s32
        """)
        for b in range(1, 5):
            a(f"s_add_u32 m0, s38, {b*4096}\ns_add_u32 s39, s36, {(b-1)*32768}\nbuffer_load_dwordx4 v8, s[4:7], s39 offen lds")
        for gq in range(3):
            for hi in range(2):
                a(f"s_add_u32 m0, s38, {A_XB + gq*8192 + hi*4096}\ns_add_u32 s39, s37, {hi*32*3072 + gq*1024}\nbuffer_load_dwordx4 v9, s[8:11], s39 offen lds")
    NPF = 3
    def a_prefetch():
        a(f"""
        s_waitcnt lgkmcnt(0)
        s_lshr_b32 s35, s2, 3
        s_sub_u32 s35, s35, 16
        s_lshl_b32 s35, s35, 2
        s_add_u32 s35, s35, s29
        s_and_b32 s36, s2, 7
        s_lshl_b32 s39, s35, 3
        s_add_u32 s39, s39, s36
        s_lshr_b32 s37, s36, 1
        s_lshl_b32 s37, s37, 21
        s_and_b32 s36, s36, 1
        s_lshl_b32 s36, s36, 11
        s_add_u32 s36, s36, s37
        s_lshl_b32 s37, s35, 15
        s_add_u32 s36, s36, s37
        v_lshlrev_b32 v10, 12, v3
        v_lshl_add_u32 v10, v2, 7, v10
        v_add_u32 v10, s36, v10
        v_add_u32 v11, 0x4000, v10
        global_load_dword v12, v10, s[44:45]
        global_load_dword v13, v11, s[44:45]
        s_cmp_lt_u32 s39, 64
        s_cselect_b32 s46, s46, s52
        s_cselect_b32 s47, s47, s53
        s_cselect_b32 s37, 0, 64
        s_sub_u32 s39, s39, s37
        s_min_u32 s37, s39, 111
        s_lshl_b32 s37, s37, 13
        v_lshlrev_b32 v10, 7, v1
        v_add_u32 v10, s37, v10
        s_cmp_lt_u32 s39, 112
        s_cselect_b64 exec, -1, 1
        global_load_dword v14, v10, s[46:47]
        s_mov_b64 exec, -1
        """)
    loader_loop(a, "k1a", 8, A_R, 11, a_issue, tail_extra=a_prefetch, extra_n=NPF)
    a.label(K + "_end")
    a("s_endpgm")

G_ST = 32768; G_R = 4
K2_CTL = G_ST*G_R
K2_LDS = K2_CTL + 3072
def gen_k2(a):
    global CTL
    CTL = K2_CTL
    K = "k2_kernel"; a.kidx = 1
    a.kname = K
    kernel_begin(a, K)
    a("s_load_dwordx4 s[40:43], s[0:1], 40\ns_load_dwordx2 s[50:51], s[0:1], 88")
    common_entry(a, 224)
    a("""
    s_and_b32 s24, s2, 7
    s_lshr_b32 s25, s2, 3
    s_and_b32 s27, s24, 1
    s_lshr_b32 s21, s24, 1
    s_lshl_b32 s21, s21, 2
    s_and_b32 s26, s25, 3
    s_add_u32 s21, s21, s26
    s_lshr_b32 s22, s25, 2
    s_lshl_b32 s23, s26, 2
    s_add_u32 s23, s23, s22
    """)
    ctl_init(a)
    srd(a, 12, 50, WS_SIZE)
    stamp(a, 1, 0, 12, 20)
    a("s_cmp_ge_u32 s20, 8\ns_cbranch_scc1 k2_load")
    XA0, XA1, ZA = 5, 6, 8
    CX0, CX1, CZ = 12, 13, 14
    ACC = 20
    ZG = 52
    FX = 84; FY = 108
    T = 132
    a("s_and_b32 s28, s20, 3\ns_lshr_b32 s29, s20, 2")
    a(f"""
    s_lshl_b32 s34, s21, 3
    s_lshl_b32 s35, s28, 1
    s_add_u32 s33, s34, s35
    s_mul_i32 s34, s33, 28
    s_lshl_b32 s35, s22, 2
    s_add_u32 s34, s34, s35
    s_lshl_b32 s35, s29, 1
    s_add_u32 s34, s34, s35
    s_lshl_b32 s36, s34, 10
    s_add_u32 s36, s36, {Z1}
    s_add_u32 s37, s36, {28*1024}
    v_lshlrev_b32 v4, 4, v1
    buffer_load_dwordx4 {vr(FX,4)}, v4, s[12:15], s36 offen
    buffer_load_dwordx4 {vr(FX+4,4)}, v4, s[12:15], s36 offen offset:1024
    buffer_load_dwordx4 {vr(FX+8,4)}, v4, s[12:15], s37 offen
    buffer_load_dwordx4 {vr(FX+12,4)}, v4, s[12:15], s37 offen offset:1024
    s_lshl_b32 s36, s33, 6
    s_add_u32 s36, s36, {GATE}
    v_lshlrev_b32 v7, 2, v2
    buffer_load_dword v{T}, v7, s[12:15], s36 offen
    buffer_load_dword v{T+1}, v7, s[12:15], s36 offen offset:64
    s_lshl_b32 s36, s33, 5
    v_add_u32 v7, s36, v7
    global_load_dword v{T+2}, v7, s[42:43]
    s_lshl_b32 s34, s34, 11
    s_lshl_b32 s35, s27, 10
    s_add_u32 s34, s34, s35
    s_add_u32 s34, s34, {HB}
    s_add_u32 s35, s34, {28*2048}
    """)
    rowtile_raddr(a, XA0, XA1, 7)
    a(f"""
    s_lshl_b32 s24, s28, 12
    v_add_u32 v{XA0}, s24, v{XA0}
    v_add_u32 v{XA1}, s24, v{XA1}
    s_lshl_b32 s24, s29, 12
    s_add_u32 s24, s24, 16384
    v_add_u32 v{ZA}, s24, v4
    s_mov_b32 s32, {hx(f2u(GC2))}
    s_mov_b32 s33, {hx(f2u(GC2))}
    v_mov_b32 v18, {hx(f2u(GC1))}
    v_mov_b32 v19, {hx(f2u(GC1))}
    s_cmp_eq_u32 s27, 0
    s_cselect_b32 s36, -1, 0
    s_waitcnt vmcnt(0)
    v_and_b32 v{T+2}, s36, v{T+2}
    v_lshlrev_b32 v{T+3}, 16, v{T+2}
    v_and_b32 v{T+4}, 0xffff0000, v{T+2}
    v_sub_f32 v{T+6}, 1.0, v{T}
    v_sub_f32 v{T+8}, 1.0, v{T+1}
    """)
    for p in range(2):
        for r in range(16): a(f"v_mov_b32 v{ACC+p*16+r}, v{T+3+p}")
    for p in range(2):
        for m in range(2):
            src = FX + (p*2+m)*4
            prs = [ZG + (p*4+2*m)*4 + 2*q for q in range(4)]
            tm = [T + 10 + 2*q for q in range(4)]
            for q, x in enumerate(prs): a(f"v_lshlrev_b32 v{x}, 16, v{src+q}\nv_and_b32 v{x+1}, 0xffff0000, v{src+q}")
            for x, t in zip(prs, tm): a(f"v_pk_mul_f32 {vr(t,2)}, {vr(x,2)}, {vr(x,2)}")
            for x, t in zip(prs, tm): a(f"v_pk_fma_f32 {vr(t,2)}, {vr(t,2)}, s[32:33], v[18:19]")
            for x, t in zip(prs, tm): a(f"v_pk_mul_f32 {vr(t,2)}, {vr(t,2)}, {vr(x,2)}")
            for t in tm: a(f"v_exp_f32 v{t}, v{t}\nv_exp_f32 v{t+1}, v{t+1}")
            for x in prs: a(f"v_pk_mul_f32 {vr(x,2)}, {vr(x,2)}, {vr(T+6+2*p,2)} op_sel_hi:[1,0]")
            for t in tm: a(f"v_pk_add_f32 {vr(t,2)}, {vr(t,2)}, 1.0 op_sel_hi:[1,0]")
            for t in tm: a(f"v_rcp_f32 v{t}, v{t}\nv_rcp_f32 v{t+1}, v{t+1}")
            for x, t in zip(prs, tm): a(f"v_pk_mul_f32 {vr(x,2)}, {vr(x,2)}, {vr(t,2)}")
    def reads(F, kk):
        cx = CX0 if kk == 0 else CX1
        out = [f"ds_read_b128 {vr(F,4)}, v{cx}", f"ds_read_b128 {vr(F+8,4)}, v{CZ} offset:{kk*8192}", f"ds_read_b128 {vr(F+4,4)}, v{cx} offset:2048"]
        for n in range(1, 4): out.append(f"ds_read_b128 {vr(F+8+4*n,4)}, v{CZ} offset:{kk*8192 + n*1024}")
        return out
    def mf(F):
        out = []
        for n in range(4):
            for p in range(2):
                d = vr(ACC + (p*4+n)*4, 4)
                out.append(f"v_mfma_f32_16x16x32_bf16 {d}, {vr(F+8+4*n,4)}, {vr(F+4*p,4)}, {d}")
        return out
    def setaddr():
        return [f"v_add_u32 v{CX0}, s31, v{XA0}", f"v_add_u32 v{CX1}, s31, v{XA1}", f"v_add_u32 v{CZ}, s31, v{ZA}"]
    tick(a)
    cons_loop(a, "k2_loop", 0, 16, G_ST, G_R, FX, FY, reads, mf, setaddr)
    stamp(a, 1, 1, 12, 20)
    for p in range(2):
        for m in range(2):
            b = (p*4+2*m)*4
            for q in range(4): a(f"v_pk_mul_f32 {vr(ACC+b+2*q,2)}, {vr(ACC+b+2*q,2)}, {vr(ZG+b+2*q,2)}")
            o = FX + (p*2+m)*4
            for q in range(4): a(f"v_cvt_pk_bf16_f32 v{o+q}, v{ACC+b+2*q}, v{ACC+b+2*q+1}")
            a(f"buffer_store_dwordx4 {vr(o,4)}, v4, s[12:15], s{34+p} offen offset:{m*2048} {STF}")
    stamp(a, 1, 4, 12, 20)
    a("s_endpgm")
    a.label("k2_load")
    srd(a, 4, 40, 2048*4096)
    a("s_sub_u32 s29, s20, 8")
    rowtile_voff(a, 8, 29, 12, 6, 7)
    a(f"""
    v_lshlrev_b32 v9, 4, v1
    s_lshl_b32 s32, s21, 19
    s_lshl_b32 s33, s27, 11
    s_add_u32 s32, s32, s33
    s_lshl_b32 s33, s27, 5
    s_lshr_b32 s34, s29, 1
    s_add_u32 s33, s33, s34
    s_mul_i32 s33, s33, 56
    s_lshl_b32 s34, s22, 3
    s_add_u32 s33, s33, s34
    s_and_b32 s34, s29, 1
    s_lshl_b32 s34, s34, 2
    s_add_u32 s33, s33, s34
    s_lshl_b32 s33, s33, 10
    s_add_u32 s33, s33, {Z2N}
    s_lshl_b32 s34, s29, 10
    s_lshl_b32 s54, s29, 12
    s_add_u32 s54, s54, 16384
    s_mov_b32 s31, 0
    """)
    def issue():
        a(f"""
        s_add_u32 s35, s30, s23
        s_and_b32 s35, s35, 15
        s_lshl_b32 s36, s35, 7
        s_add_u32 s36, s36, s32
        s_mul_i32 s37, s35, {2*56*1024}
        s_add_u32 s37, s37, s33
        s_add_u32 s38, s31, s34
        s_add_u32 m0, s31, s54
        s_add_u32 s31, s31, {G_ST}
        s_cmp_eq_u32 s31, {G_ST*G_R}
        s_cselect_b32 s31, 0, s31
        """)
        for n in range(4):
            a(f"buffer_load_dwordx4 v9, s[12:15], s37 offen offset:{n*1024} lds")
        for b in range(4):
            a(f"s_add_u32 m0, s38, {b*4096}\ns_add_u32 s39, s36, {b*32*4096}\nbuffer_load_dwordx4 v8, s[4:7], s39 offen lds")
    loader_loop(a, "k2", 16, G_R, 8, issue)
    a.label(K + "_end")
    a("s_endpgm")

W3_ST = 16384; W3_R = 8
K3_CTL = W3_ST*W3_R
K3_LDS = K3_CTL + 3072
def gen_k3(a):
    global CTL
    CTL = K3_CTL
    K = "k3_kernel"; a.kidx = 2
    a.kname = K
    kernel_begin(a, K)
    a("s_load_dwordx2 s[40:41], s[0:1], 16\ns_load_dwordx2 s[42:43], s[0:1], 56\ns_load_dwordx2 s[44:45], s[0:1], 72\ns_load_dwordx2 s[50:51], s[0:1], 88")
    common_entry(a, 256)
    a("""
    s_and_b32 s24, s2, 7
    s_lshr_b32 s25, s2, 3
    s_lshl_b32 s21, s24, 2
    s_and_b32 s26, s25, 3
    s_add_u32 s21, s21, s26
    s_lshr_b32 s22, s25, 2
    s_add_u32 s38, s22, s26
    s_and_b32 s38, s38, 3
    s_lshl_b32 s39, s26, 1
    s_add_u32 s39, s39, s22
    s_cmp_ge_u32 s39, 7
    s_cselect_b32 s27, 7, 0
    s_sub_u32 s39, s39, s27
    """)
    ctl_init(a)
    srd(a, 12, 50, WS_SIZE)
    stamp(a, 2, 0, 12, 20)
    a("s_cmp_ge_u32 s20, 8\ns_cbranch_scc1 k3_load")
    srd(a, 16, 44, 2048*1024)
    a(f"""
    s_and_b32 s28, s20, 3
    s_lshr_b32 s29, s20, 2
    s_lshl_b32 s33, s21, 2
    s_add_u32 s33, s33, s28
    v_lshlrev_b32 v4, 4, v1
    s_lshl_b32 s34, s33, 14
    s_lshl_b32 s35, s29, 10
    s_add_u32 s34, s34, s35
    s_add_u32 s34, s34, {OB}
    s_mul_i32 s36, s33, {28*2048}
    s_lshl_b32 s35, s29, 11
    s_add_u32 s36, s36, s35
    s_add_u32 s36, s36, {HB}
    """)
    ACC = 20; AH = 36; OF = 52; HF = 84; WF = 116; WA = 10; GV = 14
    WN = 4
    vm = []
    def issue_o(c):
        a(f"s_lshl_b32 s24, s38, 12\ns_add_u32 s24, s24, s34\ns_add_u32 s38, s38, 1\ns_and_b32 s38, s38, 3")
        for u in range(2):
            a(f"buffer_load_dwordx4 {vr(OF+(2*c+u)*4,4)}, v4, s[12:15], s24 offen offset:{u*2048}"); vm.append(2*c+u)
    def issue_h(n):
        u = n & 1
        if u == 0: a(f"s_lshl_b32 s26, s39, 13\ns_add_u32 s26, s26, s36\ns_add_u32 s39, s39, 1\ns_cmp_eq_u32 s39, 7\ns_cselect_b32 s39, 0, s39")
        else: a("s_add_u32 s26, s26, 4096")
        for hh in range(2):
            a(f"buffer_load_dwordx4 {vr(HF+((n%WN)*2+hh)*4,4)}, v4, s[12:15], s26 offen offset:{hh*1024}"); vm.append(n)
    a(f"s_lshl_b32 s24, s33, 6\ns_add_u32 s24, s24, {GATE}\nv_lshlrev_b32 v7, 2, v2\nbuffer_load_dword v{GV}, v7, s[12:15], s24 offen"); vm.append(-1)
    for c in range(4): issue_o(c)
    a(f"""
    v_lshrrev_b32 v7, 2, v2
    v_lshl_add_u32 v18, v3, 2, v7
    v_lshlrev_b32 v18, 7, v18
    v_and_b32 v19, 3, v2
    v_lshl_add_u32 v18, v19, 3, v18
    s_lshl_b32 s24, s29, 12
    v_add_u32 v18, s24, v18
    v_lshrrev_b32 v7, 3, v2
    v_and_b32 v19, 1, v3
    v_lshl_or_b32 v7, v19, 1, v7
    v_lshl_add_u32 v{WA}, v7, 5, v18
    v_xor_b32 v{WA+1}, 32, v{WA}
    v_xor_b32 v{WA+2}, 64, v{WA}
    v_xor_b32 v{WA+3}, 0x60, v{WA}
    """)
    def wreads(n):
        c, u = n >> 1, n & 1
        slot = c % W3_R
        if u == 0:
            wait_full(a, f"k3_w{c}", c+1)
            tick(a)
            if c == 4:
                for q in range(4): a(f"v_add_u32 v{WA+q}, 0x10000, v{WA+q}")
            if c == 8:
                for q in range(4): a(f"v_subrev_u32 v{WA+q}, 0x10000, v{WA+q}")
        for t in range(4):
            for h in range(2):
                a(f"ds_read_b64_tr_b16 {vr(WF+u*16+4*t+2*h,2)}, v{WA+t} offset:{(slot&3)*16384 + u*8192 + h*2048}")
        if u == 1 and c < 11 - W3_R:
            a(f"v_mov_b32 v{CFV}, {c+1}\nds_write_b32 v{CFW}, v{CFV}")
            return 9
        return 8
    wreads(0)
    for n in range(22):
        u = n & 1
        newer = 0
        if n + 1 < 22 and (n + 1) & 1: newer = wreads(n + 1)
        last = max(i for i, x in enumerate(vm) if x == n)
        a(f"s_waitcnt vmcnt({len(vm) - 1 - last}) lgkmcnt({newer})")
        hs = [OF + n*4] if n < 8 else [HF + ((n%WN)*2+hh)*4 for hh in range(2)]
        acc = ACC if n < 8 else AH
        for hi, hreg in enumerate(hs):
            for t in range(4):
                d = vr(acc+4*t, 4)
                first = (n in (0, 8) and hi == 0)
                a(f"v_mfma_f32_16x16x32_bf16 {d}, {vr(WF+u*16+4*t,4)}, {vr(hreg,4)}, {'0' if first else d}")
        if n + 1 < 22 and not ((n + 1) & 1): wreads(n + 1)
        nx = n + WN
        if 8 <= nx < 22: issue_h(nx)
    tick(a)
    for r in range(16): a(f"v_fma_f32 v{ACC+r}, v{ACC+r}, v{GV}, v{AH+r}")
    a(f"""
    s_lshl_b32 s24, s20, 11
    s_add_u32 s24, s24, {3*W3_ST}
    v_add_u32 v7, s24, v4
    s_xor_b32 s24, s24, 0x2000
    v_add_u32 v8, s24, v4
    s_cmp_eq_u32 s29, 0
    s_cbranch_scc1 k3_x0
    """)
    for r in range(8): a(f"v_swap_b32 v{ACC+r}, v{ACC+8+r}")
    a.label("k3_x0")
    a(f"""
    s_barrier
    ds_write_b128 v7, {vr(ACC+8,4)}
    ds_write_b128 v7, {vr(ACC+12,4)} offset:1024
    s_waitcnt lgkmcnt(0)
    s_barrier
    ds_read_b128 {vr(ACC+8,4)}, v8
    ds_read_b128 {vr(ACC+12,4)}, v8 offset:1024
    s_lshr_b32 s24, s33, 1
    s_lshl_b32 s24, s24, 5
    s_and_b32 s25, s33, 1
    s_add_u32 s24, s24, s25
    s_lshl_b32 s24, s24, 10
    s_lshl_b32 s25, s22, 7
    s_add_u32 s24, s24, s25
    s_lshl_b32 s25, s29, 6
    s_add_u32 s24, s24, s25
    v_lshlrev_b32 v7, 11, v2
    v_and_b32 v8, 1, v3
    v_lshl_add_u32 v7, v8, 5, v7
    v_lshrrev_b32 v8, 1, v3
    v_lshl_add_u32 v7, v8, 4, v7
    s_waitcnt lgkmcnt(0)
    """)
    for q in range(4): a(f"v_pk_add_f32 {vr(ACC+2*q,2)}, {vr(ACC+2*q,2)}, {vr(ACC+8+2*q,2)}")
    for q in range(4): a(f"v_cvt_pk_bf16_f32 v{ACC+q}, v{ACC+2*q}, v{ACC+2*q+1}")
    a(f"v_permlane16_swap_b32 v{ACC}, v{ACC+2}\nv_permlane16_swap_b32 v{ACC+1}, v{ACC+3}")
    a(f"buffer_store_dwordx4 {vr(ACC,4)}, v7, s[16:19], s24 offen {STF}")
    stamp(a, 2, 4, 12, 20)
    a("s_endpgm")
    a.label("k3_load")
    srd(a, 4, 40, 512*1024)
    srd(a, 8, 42, 896*1024)
    a(f"""
    s_sub_u32 s29, s20, 8
    v_lshrrev_b32 v7, 3, v1
    s_lshl_b32 s24, s29, 3
    v_add_u32 v7, s24, v7
    v_lshlrev_b32 v7, 10, v7
    v_bfe_u32 v9, v1, 1, 2
    v_xor_b32 v6, v3, v9
    v_and_b32 v9, 1, v1
    v_lshl_or_b32 v9, v6, 1, v9
    v_lshl_add_u32 v9, v9, 4, v7
    s_lshl_b32 s24, s22, 7
    v_add_u32 v9, s24, v9
    s_lshl_b32 s34, s29, 10
    """)
    def issue():
        a(f"s_and_b32 s35, s30, {W3_R-1}\ns_lshl_b32 s35, s35, 14\ns_add_u32 s35, s35, s34\ns_cmp_ge_u32 s30, 4\ns_cbranch_scc1 k3_ih")
        a("s_lshl_b32 s24, s38, 17\ns_add_u32 s38, s38, 1\ns_and_b32 s38, s38, 3")
        for q in range(4): a(f"s_add_u32 m0, s35, {q*4096}\ns_add_u32 s25, s24, {q*32768}\nbuffer_load_dwordx4 v9, s[4:7], s25 offen lds")
        a("s_branch k3_id")
        a.label("k3_ih")
        a("s_lshl_b32 s24, s39, 17\ns_add_u32 s39, s39, 1\ns_cmp_eq_u32 s39, 7\ns_cselect_b32 s39, 0, s39")
        for q in range(4): a(f"s_add_u32 m0, s35, {q*4096}\ns_add_u32 s25, s24, {q*32768}\nbuffer_load_dwordx4 v9, s[8:11], s25 offen lds")
        a.label("k3_id")
    loader_loop(a, "k3", 11, W3_R, 4, issue)
    a.label(K + "_end")
    a("s_endpgm")
    a.label("code_end")

def STAMP_GROUPS(wg):
    mlp = (wg >> 5) < 4; al = wg >= 0
    return [("z2", 0, mlp, slice(0,4)), ("z1", 0, mlp, slice(4,8)), ("mload", 0, mlp, slice(8,12)), ("attn", 0, ~mlp, slice(0,8)), ("aload", 0, ~mlp, slice(8,12)),
            ("k2c", 1, al, slice(0,8)), ("k2l", 1, al, slice(8,12)), ("k3", 2, al, slice(0,8)), ("k3l", 2, al, slice(8,12))]

HEADER = open("gated_mix__sliding_local_dilated__mixer_gmlp__prompt.s.ref").read().split("; Override launch")[0]

def gen1(stamps=False, dup=()):
    global STAMPS, STV
    STAMPS = stamps
    a = Asm()
    for l in HEADER.strip().split("\n"): a.raw(l)
    for n, l in enumerate([f"; @launch kernel=k1_kernel grid=(256,1,1) block=(768,1,1) lds={K1_LDS}",
              f"; @launch kernel=k2_kernel grid=(224,1,1) block=(768,1,1) lds={K2_LDS}",
              f"; @launch kernel=k3_kernel grid=(256,1,1) block=(768,1,1) lds={K3_LDS}"]):
        a.raw(l)
        if n in dup: a.raw(l)
    a.raw('.amdgcn_target "amdgcn-amd-amdhsa--gfx950"')
    STV = 166; gen_k1(a)
    STV = 166; gen_k2(a)
    STV = 166; gen_k3(a)
    a.raw(kernel_desc("k1_kernel", 168))
    a.raw(kernel_desc("k2_kernel", 168))
    a.raw(kernel_desc("k3_kernel", 168))
    return a.text()

def gen(stamps=False, dup=()):
    global CODE_BYTES
    import subprocess, re
    t = gen1(stamps, dup)
    open("_g.s", "w").write(t)
    subprocess.run(["clang", "-x", "assembler", "-target", "amdgcn-amd-amdhsa", "-mcpu=gfx950", "-c", "_g.s", "-o", "_g.o"], check=True)
    h = subprocess.run(["llvm-objdump", "-h", "_g.o"], capture_output=True, text=True).stdout
    CODE_BYTES = int(re.search(r"\.text\s+([0-9a-f]+)", h).group(1), 16) - 4
    return gen1(stamps, dup)

if __name__ == "__main__":
    out = sys.argv[1] if len(sys.argv) > 1 else "gated_mix__sliding_local_dilated__mixer_gmlp__prompt.s"
    dup = [int(x[5:]) for x in sys.argv if x.startswith("--dup")]
    open(out, "w").write(gen("--stamps" in sys.argv, dup))
    print("code bytes", hex(CODE_BYTES))
```

```python
import sys, struct
from asmlib import *

def f2u(x): return struct.unpack("<I", struct.pack("<f", x))[0]
def hx(x): return "0x%08x" % (x & 0xffffffff)

Z2N = 0x0000000
Z1  = 0x0380000
OB  = 0x0700000
HB  = 0x0900000
GATE= 0x1000000
MBOX= 0x1010000
FLG = 0x1050000
STMP= 0x1060000
WS_SIZE = 0x1700000
KNAME = "gated_mix__sliding_local_dilated__mixer_gmlp__prompt_kernel"
LOG2E = 1.4426950408889634
GC1 = -2.0 * LOG2E * 0.7978845608028654
GC2 = GC1 * 0.044715
STAMPS = False
CODE_BYTES = 0x4000
STV = 254
STF = "sc0 sc1"
DP = "row_mask:0xf"
H_HAS_GATE = False

def srd(a, d, b, size):
    a(f"s_mov_b32 s{d}, s{b}\ns_and_b32 s{d+1}, s{b+1}, 0xffff\ns_mov_b32 s{d+2}, {hx(size)}\ns_mov_b32 s{d+3}, 0x20000")
def vr(b, n): return f"v[{b}:{b+n-1}]"

def tick(a):
    if not STAMPS: return
    a(f"""
    s_memrealtime s[90:91]
    s_memtime s[94:95]
    s_mov_b32 m0, s93
    s_waitcnt lgkmcnt(0)
    v_writelane_b32 v{STV}, s90, m0
    v_writelane_b32 v{STV-1}, s94, m0
    s_cselect_b32 s92, 1, 0
    s_add_u32 s93, s93, 1
    s_cmp_eq_u32 s92, 1
    """)
def ltick(a):
    if not STAMPS: return
    a(f"""
    s_mov_b32 m0, s93
    s_waitcnt lgkmcnt(0)
    v_writelane_b32 v{STV}, s90, m0
    v_writelane_b32 v{STV-1}, s94, m0
    s_memrealtime s[90:91]
    s_memtime s[94:95]
    s_add_u32 s93, s93, 1
    """)
def tick0(a):
    if not STAMPS: return
    a(f"s_mov_b32 s93, 0\nv_mov_b32 v{STV}, 0")
    tick(a)
def tick_end(a):
    if not STAMPS: return
    tick(a)
    a(f"""
    s_lshl_b32 s92, s2, 4
    s_add_u32 s92, s92, s20
    s_lshl_b32 s92, s92, 8
    s_add_u32 s92, s92, {STMP + a.kidx*256*16*256}
    v_lshlrev_b32 v{STV+1}, 2, v1
    buffer_store_dword v{STV}, v{STV+1}, s[12:15], s92 offen
    s_add_u32 s92, s92, 0x300000
    buffer_store_dword v{STV-1}, v{STV+1}, s[12:15], s92 offen
    """)

class LoaderProg:
    def __init__(self, a): self.a = a; self.q = []
    def call(self, label, n, tag):
        self.a(f"s_call_b64 s[56:57], {label}"); self.q += [tag] * n
    def extra(self, n): self.q += [None] * n
    def drained(self): self.q = []
    def bar(self, *need):
        idx = [i for i, x in enumerate(self.q) if x in need]
        if idx:
            n = len(self.q) - 1 - max(idx); assert n <= 63
            self.a(f"s_waitcnt vmcnt({n})")
            self.q = self.q[len(self.q) - n:] if n else []
        self.a("s_barrier")
        ltick(self.a)

def rowtile_voff(a, dst, lw_s, stride_log, t1, t2):
    a(f"""
    s_and_b32 s24, s{lw_s}, 1
    s_lshr_b32 s25, s{lw_s}, 1
    s_lshl_b32 s26, s24, 4
    s_add_u32 s26, s26, s25
    v_lshrrev_b32 v{t1}, 3, v1
    v_lshlrev_b32 v{t1}, 1, v{t1}
    v_add_u32 v{t1}, s26, v{t1}
    v_lshlrev_b32 v{t1}, {stride_log}, v{t1}
    s_lshl_b32 s24, s24, 2
    v_lshrrev_b32 v{t2}, 4, v1
    v_add_u32 v{t2}, s24, v{t2}
    v_and_b32 v{dst}, 7, v1
    v_xor_b32 v{dst}, v{dst}, v{t2}
    v_lshl_add_u32 v{dst}, v{dst}, 4, v{t1}
    """)

def rowtile_raddr(a, dst0, dst1, t1):
    a(f"""
    v_lshrrev_b32 v{t1}, 1, v2
    v_xor_b32 v{t1}, v{t1}, v3
    v_lshlrev_b32 v{t1}, 4, v{t1}
    v_lshl_add_u32 v{dst0}, v2, 7, v{t1}
    v_xor_b32 v{dst1}, 64, v{dst0}
    """)

def interleave(a, mf, rd, tailroom=6):
    mf = list(mf); rd = list(rd)
    n = len(mf); k = 0
    lim = max(1, n - tailroom)
    for idx, m in enumerate(mf):
        a(m)
        want = min(len(rd), -(-len(rd) * (idx + 1) // lim))
        while k < want:
            a(rd[k]); k += 1
    while k < len(rd):
        a(rd[k]); k += 1

AGE = 6
def sched_body(mfA, mfB, rdY, rdX, misc_pre, bar, bpos, lat=4):
    nA, nB = len(mfA), len(mfB); G = nA + nB
    a0 = nB - bpos
    slots = [[] for _ in range(G)]
    avail = G - lat
    nx, ny = len(rdX), len(rdY)
    if nx <= a0 and ny <= avail - a0:
        for j, r in enumerate(rdX): slots[j].append(r)
        for j, r in enumerate(rdY): slots[a0 + j].append(r)
        lastr = a0 + ny - 1
    else:
        allr = list(rdX) + list(rdY); n = len(allr)
        span = min(avail, n)
        for j, r in enumerate(allr):
            g = j * span // n
            if j >= nx: g = max(g, a0)
            slots[g].append(r)
        lastr = span - 1
    m = list(misc_pre); g = lastr + 1
    per = -(-len(m) // max(1, G - g))
    per = max(per, 2)
    while m:
        for _ in range(per):
            if m: slots[min(g, G-1)].append(m.pop(0))
        g += 1
    seq = []
    for k, x in enumerate(mfA): seq.append(x); seq += slots[a0 + k]
    for k, x in enumerate(mfB):
        if k == bpos: seq.append("BAR")
        seq.append(x)
        seq += slots[k - bpos] if k >= bpos else slots[a0 + nA + k]
    return add_waits(seq, bar)

def add_waits(seq, bar, check=True):
    out = None
    q = []; clk = 0
    nb = 0
    for it in range(2):
        out = []; nb = 0
        for x in seq:
            if isinstance(x, tuple) or x in ("BAR", "BARN"):
                if x == "BAR":
                    if q: out.append("s_waitcnt lgkmcnt(0)")
                    q = []
                elif isinstance(x, tuple):
                    idx = [i for i, d in enumerate(q) if d[0] & x[1]]
                    if idx:
                        n = min(len(q) - 1 - max(idx), 14)
                        out.append(f"s_waitcnt lgkmcnt({n})")
                        q = q[len(q) - n:] if n else []
                out += bar[nb] if isinstance(bar[0], list) else bar
                nb += 1
                continue
            ins = Ins("    " + x)
            if ins.mfma:
                idx = [i for i, d in enumerate(q) if d[0] & ins.srcAB]
                if idx:
                    idx += [i for i, d in enumerate(q) if clk - d[1] >= AGE]
                    n = min(len(q) - 1 - max(idx), 14)
                    out.append(f"s_waitcnt lgkmcnt({n})")
                    q = q[len(q) - n:] if n else []
                clk += 1
            out.append(x)
            if ins.ds: q.append((set(ins.w), clk))
    L = [Ins("    " + x) for x in seq if not isinstance(x, tuple) and x not in ("BAR", "BARN")]
    for i, r in enumerate(L):
        if not r.ds or not check: continue
        uses = [k for k in range(1, len(L)) if L[(i + k) % len(L)].mfma and (L[(i + k) % len(L)].srcAB & r.w)]
        mfpos = [k for k in range(1, len(L)) if L[(i + k) % len(L)].mfma]
        if uses:
            span = len([k for k in mfpos if uses[0] <= k <= uses[-1]])
            assert span <= len(mfpos) // 2 + 1, f"read placed inside its use range: {r.line}"
    return out

def cons_loop(a, name, cnt, ST, R, FX, FY, reads, mfma, setaddr, first_barrier=True, last_barrier=False, bpos=3, lat=4, adv=None):
    if first_barrier:
        for x in setaddr(): a(x)
        a("s_barrier")
        tick(a)
    for x in reads(FX, 0): a(x)
    a(f"s_mov_b32 s30, 0")
    a.raw(".p2align 3")
    a.label(name)
    if adv is None: adv = [f"s_add_u32 s31, s31, {ST}", f"s_cmp_eq_u32 s31, {ST*R}", "s_cselect_b32 s31, 0, s31"]
    misc = adv + setaddr() + ["s_add_u32 s30, s30, 1", f"s_cmp_eq_u32 s30, {cnt}"]
    bar = ["s_barrier"] if last_barrier else [f"s_cbranch_scc1 {name}_nb", "s_barrier", f"{name}_nb:"]
    for x in sched_body(mfma(FX), mfma(FY), reads(FY, 1), reads(FX, 0), misc, bar, bpos, lat): a(x)
    a(f"s_cbranch_scc0 {name}")
    a("s_waitcnt lgkmcnt(0)")

def common_entry(a, nwg):
    a(f"""
    s_cmp_ge_u32 s2, {nwg}
    s_cbranch_scc1 {a.kname}_end
    v_lshrrev_b32 v4, 6, v0
    v_and_b32 v1, 63, v0
    v_and_b32 v2, 15, v0
    v_readfirstlane_b32 s20, v4
    v_lshrrev_b32 v3, 4, v1
    """)

def gelu_block(a, prs, tm, cs, cv):
    for x, t in zip(prs, tm): a(f"v_pk_mul_f32 {vr(t,2)}, {vr(x,2)}, {vr(x,2)}")
    for x, t in zip(prs, tm): a(f"v_pk_fma_f32 {vr(t,2)}, {vr(t,2)}, s[{cs}:{cs+1}], {vr(cv,2)}")
    for x, t in zip(prs, tm): a(f"v_pk_mul_f32 {vr(t,2)}, {vr(t,2)}, {vr(x,2)}")
    for t in tm: a(f"v_exp_f32 v{t}, v{t}\nv_exp_f32 v{t+1}, v{t+1}")
    for t in tm: a(f"v_pk_add_f32 {vr(t,2)}, {vr(t,2)}, 1.0 op_sel_hi:[1,0]")
    for t in tm: a(f"v_rcp_f32 v{t}, v{t}\nv_rcp_f32 v{t+1}, v{t+1}")
    for x, t in zip(prs, tm): a(f"v_pk_mul_f32 {vr(x,2)}, {vr(x,2)}, {vr(t,2)}")

def code_prefetch(a, wave, vt):
    L = a.newlabel("cpf")
    a(f"""
    s_cmp_lg_u32 s20, {wave}
    s_cbranch_scc1 {L}
    s_getpc_b64 s[58:59]
    s_and_b32 s58, s58, 0xffffff00
    s_lshr_b32 s24, s2, 3
    s_lshl_b32 s24, s24, 10
    v_lshlrev_b32 v{vt}, 7, v1
    v_add_u32 v{vt}, s24, v{vt}
    v_min_u32 v{vt}, {hx(CODE_BYTES)}, v{vt}
    s_mov_b64 exec, 0xff
    global_load_dword v{vt}, v{vt}, s[58:59]
    s_mov_b64 exec, -1
    """)
    a.label(L)

def tr_addr(a, WA, rowmul_log, base_expr, nslots, xor_s=None):
    a(f"""
    v_lshrrev_b32 v7, 2, v2
    v_lshl_add_u32 v18, v3, {rowmul_log}, v7
    v_lshlrev_b32 v18, 7, v18
    v_and_b32 v19, 3, v2
    v_lshl_add_u32 v18, v19, 3, v18
    v_add_u32 v18, {base_expr}, v18
    v_lshrrev_b32 v7, 3, v2
    v_and_b32 v19, 1, v3
    v_lshl_or_b32 v7, v19, 1, v7
    """)
    if xor_s: a(f"v_xor_b32 v7, {xor_s}, v7")
    a(f"v_lshl_add_u32 v{WA}, v7, 5, v18")
    for q in range(1, nslots): a(f"v_xor_b32 v{WA+q}, {q*32}, v{WA}")

A_XB = 20480; A_ST = 45056; A_R = 3
M_XB = 16384; M_ST = 32768; M_R = 4
ZB = 0
WB = 65536; WE = 163840
RELW = 3*16384 + 15360
PSLEEP = 6
LDS_BYTES = 163840
LDF = "sc1"
SPIN = "0x40000"
HK_A = 3; HK_B = 5; OFL = 2
WSCHED = {0:1, 1:1, 2:1, 3:1, 4:1, 5:1, 6:1, 7:1, 8:1, 9:1, 10:1, 11:1, 13:1, 15:1, 20:1, 21:1, 22:1, 23:1, 28:1, 30:1}
TOUCH1 = 3

def tag_load(a, NC): a(f"v_mov_b32 v{NC+2}, 0\nglobal_load_dwordx2 {vr(NC+4,2)}, v{NC+2}, s[84:85] sc0 sc1")
def tag_get(a, NC):
    L = a.newlabel("tag")
    a(f"""
    s_mov_b32 s47, 0
{L}w:
    s_waitcnt vmcnt(0)
    v_readfirstlane_b32 s62, v{NC+4}
    v_readfirstlane_b32 s63, v{NC+5}
    s_add_u32 s47, s47, 1
    s_cmp_lg_u32 s62, 0
    s_cbranch_scc1 {L}k
    global_load_dwordx2 {vr(NC+4,2)}, v{NC+2}, s[84:85] sc0 sc1
    s_cmp_lt_u32 s47, {SPIN}
    s_cbranch_scc1 {L}w
{L}k:
    """)
def flag_set(a, soff, NC):
    a(f"""
    v_mov_b32 v{NC}, s62
    v_mov_b32 v{NC+1}, s63
    s_waitcnt vmcnt(0)
    s_mov_b64 exec, 1
    buffer_store_dwordx2 {vr(NC,2)}, off, s[12:15], {soff} sc0 sc1
    s_mov_b64 exec, -1
    """)
def flag_poll(a, voff, NC):
    L = a.newlabel("poll")
    a(f"""
    s_mov_b32 s47, 0
{L}w:
    buffer_load_dwordx2 {vr(NC,2)}, v{voff}, s[12:15], 0 offen sc0 sc1
    s_add_u32 s47, s47, 1
    s_waitcnt vmcnt(0)
    v_cmp_ne_u64 vcc, s[62:63], {vr(NC,2)}
    s_cmp_gt_u32 s47, {SPIN}
    s_cbranch_scc1 {L}k
    s_cbranch_vccz {L}k
    s_sleep {PSLEEP}
    s_branch {L}w
{L}k:
    """)
def wg_poll(a, voff, NC, x, RELW):
    L = a.newlabel("wp")
    a(f"s_xor_b32 s60, s62, {x}\ns_mov_b32 s61, s63\nv_mov_b32 v{NC+2}, {RELW}\ns_cmp_lg_u32 s29, 0\ns_cbranch_scc1 {L}o")
    flag_poll(a, voff, NC)
    a(f"v_mov_b32 v{NC}, s60\nv_mov_b32 v{NC+1}, s61\nds_write_b64 v{NC+2}, {vr(NC,2)}\ns_branch {L}d")
    a(f"""
{L}o:
    s_waitcnt vmcnt(0)
{L}s:
    s_sleep 1
    ds_read_b64 {vr(NC,2)}, v{NC+2}
    s_waitcnt lgkmcnt(0)
    v_cmp_ne_u64 vcc, s[60:61], {vr(NC,2)}
    s_cbranch_vccnz {L}s
{L}d:
    """)

def gen_fused(a):
    K = KNAME; a.kidx = 0; a.kname = "fk"
    kernel_begin(a, K)
    a("s_load_dwordx16 s[64:79], s[0:1], 0\ns_load_dwordx8 s[80:87], s[0:1], 64")
    common_entry(a, 256)
    a("""
    s_and_b32 s27, s2, 1
    s_lshr_b32 s25, s2, 3
    s_bfe_u32 s21, s2, 0x10001
    s_lshl_b32 s21, s21, 3
    s_and_b32 s26, s25, 7
    s_add_u32 s21, s21, s26
    s_bfe_u32 s22, s2, 0x10002
    s_lshl_b32 s22, s22, 2
    s_lshr_b32 s28, s25, 3
    s_add_u32 s22, s22, s28
    s_lshl_b32 s23, s28, 1
    s_add_u32 s23, s23, s26
    """)
    code_prefetch(a, 3, 250)
    a("""
    s_and_b32 s44, s2, 7
    s_lshl_b32 s44, s44, 2
    s_and_b32 s24, s25, 3
    s_add_u32 s44, s44, s24
    s_lshr_b32 s45, s25, 2
    s_and_b32 s29, s20, 3
    s_waitcnt lgkmcnt(0)
    """)
    srd(a, 4, 64, 2048*1024)
    srd(a, 12, 86, WS_SIZE)
    tick0(a)
    a("s_cmp_ge_u32 s20, 4\ns_cbranch_scc1 f_load")
    XA0, XA1, WA = 5, 6, 8
    CX0, CX1, CW = 12, 13, 14
    AC2 = 20; AC1 = 76; FX = 132; FY = 168; SUM = 204; SQ = 212
    a("s_cmp_eq_u32 s27, 1\ns_cbranch_scc1 f_attn")
    NC = 220
    a(f"""
    s_or_b32 s36, s2, s20
    s_cmp_lg_u32 s36, 0
    s_cbranch_scc1 f_notag
    s_memrealtime s[36:37]
    v_mov_b32 v{NC+2}, 0
    s_waitcnt lgkmcnt(0)
    s_or_b32 s36, s36, 1
    v_mov_b32 v{NC}, s36
    v_mov_b32 v{NC+1}, s37
    s_mov_b64 exec, 1
    global_store_dwordx2 v{NC+2}, {vr(NC,2)}, s[84:85] sc0 sc1
    s_mov_b64 exec, -1
f_notag:
    """)
    rowtile_raddr(a, XA0, XA1, 7)
    a(f"s_lshl_b32 s24, s29, 12\nv_add_u32 v{XA0}, s24, v{XA0}\nv_add_u32 v{XA1}, s24, v{XA1}")
    tr_addr(a, WA, 3, M_XB, 4)
    for r in range(0, 112, 2): a(f"v_pk_mov_b32 {vr(AC2+r,2)}, 0, 0")
    def m_reads(F, kk):
        cx = CX0 if kk == 0 else CX1
        out = [f"ds_read_b128 {vr(F+4*p,4)}, v{cx} offset:{p*2048}" for p in range(2)]
        for n in range(7):
            for h in range(2):
                out.append(f"ds_read_b64_tr_b16 {vr(F+8+4*n+2*h,2)}, v{CW+(n&3)} offset:{(n>>2)*8192 + kk*4096 + h*512}")
        return out
    def m_mfma(F, ACC, swap):
        out = []
        for n in range(7):
            for p in range(2):
                d = vr(ACC + (p*7+n)*4, 4); x = vr(F+4*p, 4); w = vr(F+8+4*n, 4)
                out.append(f"v_mfma_f32_16x16x32_bf16 {d}, {w if swap else x}, {x if swap else w}, {d}")
        return out
    def m_setaddr():
        return [f"v_add_u32 v{CX0}, s31, v{XA0}", f"v_add_u32 v{CX1}, s31, v{XA1}"] + [f"v_add_u32 v{CW+q}, s31, v{WA+q}" for q in range(4)]
    a(f"s_mov_b32 s31, {2*M_ST}")
    cons_loop(a, "f_z2loop", 8, M_ST, M_R, FX, FY, m_reads, lambda F: m_mfma(F, AC2, False), m_setaddr, True, True, bpos=7, lat=5)
    tick(a)
    tag_load(a, NC)
    a(f"s_mov_b32 s32, {hx(f2u(GC2))}\ns_mov_b32 s33, {hx(f2u(GC2))}\nv_mov_b32 v18, {hx(f2u(GC1))}\nv_mov_b32 v19, {hx(f2u(GC1))}")
    T = FY
    for n in range(7):
        prs = [AC2 + (p*7+n)*4 + 2*q for p in range(2) for q in range(2)]
        gelu_block(a, prs, [T + 2*k for k in range(4)], 32, 18)
        for k, x in enumerate(prs):
            if n == 0: a(f"v_pk_mul_f32 {vr(SQ+2*k,2)}, {vr(x,2)}, {vr(x,2)}")
            else:
                a(f"v_pk_fma_f32 {vr(SQ+2*k,2)}, {vr(x,2)}, {vr(x,2)}, {vr(SQ+2*k,2)}")
                a(f"v_pk_add_f32 {vr(SUM+2*k,2)}, {vr(x,2)}, {vr(x-4 if n == 1 else SUM+2*k,2)}")
    seq = [(base+p*4+r, base+p*4+r+2) for base in (SUM, SQ) for p in range(2) for r in range(2)]
    for lo, hi in seq: a(f"v_add_f32_dpp v{lo}, v{lo}, v{lo} row_ror:8 {DP} bank_mask:0x3")
    for lo, hi in seq: a(f"v_add_f32_dpp v{lo}, v{hi}, v{hi} row_ror:8 {DP} bank_mask:0xc")
    seq = [(base+p*4, base+p*4+1) for base in (SUM, SQ) for p in range(2)]
    for lo, hi in seq: a(f"v_add_f32_dpp v{lo}, v{lo}, v{lo} row_shl:4 {DP} bank_mask:0x5")
    for lo, hi in seq: a(f"v_add_f32_dpp v{lo}, v{hi}, v{hi} row_shr:4 {DP} bank_mask:0xa")
    for qp in ("[1,0,3,2]", "[2,3,0,1]"):
        for lo, hi in seq: a(f"v_add_f32_dpp v{lo}, v{lo}, v{lo} quad_perm:{qp} {DP} bank_mask:0xf")
    tag_get(a, NC)
    a(f"""
    v_and_b32 v7, 1, v2
    v_cmp_eq_u32 vcc, 1, v7
    v_lshrrev_b32 v4, 2, v2
    v_lshl_add_u32 v4, v4, 1, v7
    v_lshl_add_u32 v4, v3, 3, v4
    v_lshlrev_b32 v4, 4, v4
    v_cndmask_b32 v{T}, v{SUM}, v{SUM+4}, vcc
    v_cndmask_b32 v{T+1}, v{SQ}, v{SQ+4}, vcc
    v_mov_b32 v{T+2}, s62
    v_mov_b32 v{T+3}, s63
    s_lshl_b32 s34, s21, 2
    s_add_u32 s34, s34, s29
    s_lshl_b32 s34, s34, 12
    s_add_u32 s34, s34, {MBOX}
    s_lshl_b32 s35, s22, 9
    s_add_u32 s35, s35, s34
    s_mov_b32 s36, 0x33333333
    s_mov_b32 s37, 0x33333333
    s_mov_b64 exec, s[36:37]
    buffer_store_dwordx4 {vr(T,4)}, v4, s[12:15], s35 offen sc0 sc1
    s_mov_b64 exec, -1
    s_nop 1
    """)
    tick(a)
    P = 226; PA = 242; L16 = 243
    def z1_base():
        a(f"""
        s_lshl_b32 s60, s21, 5
        s_lshl_b32 s61, s22, 2
        s_add_u32 s60, s60, s61
        s_add_u32 s60, s60, s29
        s_mul_i32 s60, s60, 7168
        s_add_u32 s60, s60, {Z1}
        s_add_u32 s61, s60, 4096
        s_lshl_b32 s48, s22, 6
        s_lshl_b32 s49, s21, 2
        s_add_u32 s48, s48, s49
        s_add_u32 s48, s48, s29
        s_lshl_b32 s48, s48, 3
        """)
    z1_base()
    a(f"""
    v_and_b32 v{PA}, 7, v2
    v_lshl_add_u32 v{PA}, v3, 3, v{PA}
    v_lshlrev_b32 v{PA}, 4, v{PA}
    v_lshrrev_b32 v7, 3, v2
    v_lshl_add_u32 v{PA}, v7, 9, v{PA}
    v_lshlrev_b32 v{L16}, 4, v1
    s_mov_b32 s49, {HK_A}
    s_barrier
    """)
    madv = [f"s_add_u32 s31, s31, {M_ST}", f"s_and_b32 s31, s31, {M_ST*M_R-1}", "s_cmp_eq_u32 s30, s49", "s_cbranch_scc1 f_mhook", "f_mhookr:"]
    cons_loop(a, "f_z1loop", 8, M_ST, M_R, FX, FY, m_reads, lambda F: m_mfma(F, AC1, True), m_setaddr, False, False, bpos=7, lat=5, adv=madv)
    tick(a)
    a(f"s_add_u32 s49, s48, {FLG}")
    flag_set(a, "s49", NC)
    a("s_barrier")
    tick(a)
    a(f"""
    s_lshl_b32 s24, s21, 2
    s_add_u32 s24, s24, s29
    s_lshl_b32 s24, s24, 6
    v_lshlrev_b32 v7, 2, v2
    v_add_u32 v7, s24, v7
    global_load_dword v{SUM}, v7, s[76:77]
    s_mov_b32 s49, 3
    """)
    for m in range(7):
        gelu_block(a, [AC1+8*m+2*q for q in range(4)], [FY + 2*k for k in range(4)], 32, 18)
        for q in range(4): a(f"v_cvt_pk_bf16_f32 v{FX+4*m+q}, v{AC1+8*m+2*q}, v{AC1+8*m+2*q+1}")
    for m in range(7): a(f"buffer_store_dwordx4 {vr(FX+4*m,4)}, v{L16}, s[12:15], s{60+(m>>2)} offen offset:{(m&3)*1024} {STF}")
    a(f"s_waitcnt vmcnt(7)\nv_lshlrev_b32 v{SUM+2}, 16, v{SUM}\nv_and_b32 v{SUM+4}, 0xffff0000, v{SUM}\ns_branch f_join")
    def poll_loads():
        for j in range(4): a(f"buffer_load_dwordx4 {vr(P+4*j,4)}, v{PA}, s[12:15], s34 offen offset:{j*1024} sc0 sc1")
    a.label("f_mhook")
    a(f"s_cmp_eq_u32 s49, {HK_A}\ns_cbranch_scc0 f_mhook2\ns_mov_b32 s49, {HK_B}")
    poll_loads()
    a("s_branch f_mhookr")
    a.label("f_mhook2")
    tick(a)
    a("s_mov_b32 s47, 0\ns_branch f_pollc")
    a.label("f_poll")
    poll_loads()
    a.label("f_pollc")
    a("s_waitcnt vmcnt(0)")
    a(f"v_xor_b32 v7, s62, v{P+2}\nv_xor_b32 v4, s63, v{P+3}\nv_or_b32 v7, v7, v4")
    for j in range(1, 4):
        a(f"v_xor_b32 v4, s62, v{P+4*j+2}\nv_xor_b32 v{P+4*j+2}, s63, v{P+4*j+3}\nv_or3_b32 v7, v7, v4, v{P+4*j+2}")
    a(f"v_cmp_ne_u32 vcc, 0, v7\ns_add_u32 s47, s47, 1\ns_cmp_gt_u32 s47, {SPIN}\ns_cbranch_scc1 f_pollx\ns_cbranch_vccnz f_poll")
    a.label("f_pollx")
    tick(a)
    a(f"""
    v_pk_add_f32 {vr(P,2)}, {vr(P,2)}, {vr(P+4,2)}
    v_pk_add_f32 {vr(P+8,2)}, {vr(P+8,2)}, {vr(P+12,2)}
    v_pk_add_f32 {vr(P,2)}, {vr(P,2)}, {vr(P+8,2)}
    s_lshl_b32 s34, s21, 2
    s_add_u32 s34, s34, s29
    v_add_f32_dpp v{P}, v{P}, v{P} row_ror:8 {DP} bank_mask:0xf
    v_add_f32_dpp v{P+1}, v{P+1}, v{P+1} row_ror:8 {DP} bank_mask:0xf
    s_lshl_b32 s35, s22, 6
    v_mul_f32 v{P}, {hx(f2u(1.0/896))}, v{P}
    v_mul_f32 v{P+1}, {hx(f2u(1.0/896))}, v{P+1}
    v_fma_f32 v{P+1}, -v{P}, v{P}, v{P+1}
    v_max_f32 v{P+1}, 0, v{P+1}
    v_add_f32 v{P+1}, {hx(f2u(1e-5))}, v{P+1}
    v_rsq_f32 v{P+1}, v{P+1}
    s_add_u32 s34, s34, s35
    v_mul_f32 v{P}, v{P}, v{P+1}
    v_sub_f32 v{P}, 0, v{P}
    s_mul_i32 s34, s34, 7168
    s_add_u32 s34, s34, {Z2N}
    s_add_u32 s35, s34, 4096
    """)
    for p in range(2):
        for r in range(4):
            a(f"v_mov_b32_dpp v{SQ+p*4+r}, v{P+1} row_newbcast:{2*r+p} {DP} bank_mask:0xf")
            a(f"v_mov_b32_dpp v{SUM+p*4+r}, v{P} row_newbcast:{2*r+p} {DP} bank_mask:0xf")
    for n in range(7):
        for p in range(2):
            for q in range(2):
                x = AC2 + (p*7+n)*4 + 2*q
                a(f"v_pk_fma_f32 {vr(x,2)}, {vr(x,2)}, {vr(SQ+p*4+2*q,2)}, {vr(SUM+p*4+2*q,2)}")
        for r in range(4): a(f"v_cvt_pk_bf16_f32 v{AC2+n*4+r}, v{AC2+n*4+r}, v{AC2+(7+n)*4+r}")
        a(f"buffer_store_dwordx4 {vr(AC2+n*4,4)}, v{L16}, s[12:15], s{34 + (n>>2)} offen offset:{(n&3)*1024} {STF}")
    tick(a)
    a("s_branch f_mhookr")

    a.label("f_attn")
    QA = 20; KA = 52; VA = 92
    AFX = 132; AFY = 184
    MC, MP, AC, AP = 236, 240, 244, 246
    a(f"""
    s_lshl_b32 s24, s21, 7
    s_lshl_b32 s25, s22, 4
    s_add_u32 s24, s24, s25
    s_lshl_b32 s25, s29, 2
    s_add_u32 s24, s24, s25
    s_lshl_b32 s25, s24, 10
    v_lshlrev_b32 v4, 4, v1
    """)
    for q in range(4): a(f"buffer_load_dwordx4 {vr(AFX+4*q,4)}, v4, s[4:7], s25 offen offset:{q*1024}")
    a(f"global_load_dwordx4 {vr(AFX+16,4)}, v4, s[80:81]")
    rowtile_raddr(a, XA0, XA1, 7)
    tr_addr(a, WA, 3, A_XB, 1, "s29")
    for r in range(0, 112, 2): a(f"v_pk_mov_b32 {vr(QA+r,2)}, 0, 0")
    a(f"v_lshlrev_b32 v7, 2, v3\nv_sub_u32 v7, v2, v7\nv_mov_b32 v18, {hx(f2u(-1e30))}")
    for r in range(4):
        a(f"""
        v_subrev_u32 v19, {r}, v7
        v_cmp_gt_u32 vcc, 8, v19
        v_cmp_gt_i32 s[38:39], -8, v19
        v_cndmask_b32 v{MC+r}, v18, 0, vcc
        v_cndmask_b32 v{MP+r}, v18, 0, s[38:39]
        v_cndmask_b32 v19, 0, -1, vcc
        """)
        if r % 2 == 0: a(f"v_and_b32 v{AC+r//2}, 0xffff, v19")
        else: a(f"v_and_b32 v19, 0xffff0000, v19\nv_or_b32 v{AC+r//2}, v{AC+r//2}, v19")
    a(f"v_not_b32 v{AP}, v{AC}\nv_not_b32 v{AP+1}, v{AC+1}")
    G = AFX + 20
    for q in range(4): a(f"v_mov_b32 v{G+q}, 0")
    a("s_waitcnt vmcnt(0)")
    for e in range(4):
        for q in range(4): a(f"v_dot2c_f32_bf16 v{G+q}, v{AFX+4*q+e}, v{AFX+16+e}")
    for sh in (8, 4, 2, 1):
        for q in range(4): a(f"v_add_f32_dpp v{G+q}, v{G+q}, v{G+q} row_ror:{sh} {DP} bank_mask:0xf")
    a(f"""
    v_permlane16_swap_b32 v{G}, v{G+1}
    v_permlane16_swap_b32 v{G+2}, v{G+3}
    v_add_f32 v{G}, v{G}, v{G+1}
    v_add_f32 v{G+2}, v{G+2}, v{G+3}
    s_and_b32 s25, s24, 31
    s_lshr_b32 s25, s25, 1
    v_permlane32_swap_b32 v{G}, v{G+2}
    v_add_f32 v{G}, v{G}, v{G+2}
    s_andn2_b32 s24, s24, 31
    s_add_u32 s24, s24, s25
    s_lshl_b32 s24, s24, 2
    s_add_u32 s24, s24, {GATE}
    v_mul_f32 v{G}, {hx(f2u(-LOG2E))}, v{G}
    v_exp_f32 v{G}, v{G}
    v_and_b32 v4, 1, v3
    v_lshlrev_b32 v4, 6, v4
    v_lshrrev_b32 v7, 1, v3
    v_lshl_add_u32 v4, v7, 2, v4
    v_add_f32 v{G}, 1.0, v{G}
    v_rcp_f32 v{G}, v{G}
    s_mov_b32 s36, 0x00010001
    s_mov_b32 s37, 0x00010001
    s_mov_b64 exec, s[36:37]
    buffer_store_dword v{G}, v4, s[12:15], s24 offen {STF}
    s_mov_b64 exec, -1
    """)
    def a_reads(F, kk):
        cx = CX0 if kk == 0 else CX1
        out = []
        for gq in (1, 2, 0):
            for h in range(2):
                out.append(f"ds_read_b64_tr_b16 {vr(F+40+4*gq+2*h,2)}, v{CW} offset:{gq*8192 + kk*4096 + h*512}")
        for b in range(5):
            for p in range(2): out.append(f"ds_read_b128 {vr(F+(p*5+b)*4,4)}, v{cx} offset:{b*4096 + p*2048}")
        return out
    def a_mfma(F):
        out = []
        for b in range(5):
            for p in range(2):
                x = vr(F+(p*5+b)*4, 4); kd = vr(KA+(p*5+b)*4, 4); vd = vr(VA+(p*5+b)*4, 4)
                out.append(f"v_mfma_f32_16x16x32_bf16 {kd}, {vr(F+44,4)}, {x}, {kd}")
                out.append(f"v_mfma_f32_16x16x32_bf16 {vd}, {x}, {vr(F+48,4)}, {vd}")
                if b:
                    qd = vr(QA+(p*4+b-1)*4, 4)
                    out.append(f"v_mfma_f32_16x16x32_bf16 {qd}, {vr(F+40,4)}, {x}, {qd}")
        return out
    def a_setaddr():
        return [f"v_add_u32 v{CX0}, s31, v{XA0}", f"v_add_u32 v{CX1}, s31, v{XA1}", f"v_add_u32 v{CW}, s31, v{WA}"]
    a("s_mov_b32 s31, 0")
    cons_loop(a, "f_aloop", 8, A_ST, A_R, AFX, AFY, a_reads, a_mfma, a_setaddr, True, True, bpos=1)
    tick(a)
    tag_load(a, NC)
    QP, KP, VP = 132, 148, 168
    MP0 = 188; ONE = 192; MX = 196; MT = 204
    a("s_cmp_eq_u32 s21, 0\ns_cselect_b64 s[36:37], 0, -1")
    for r in range(4): a(f"v_cndmask_b32 v{MP0+r}, v18, v{MP+r}, s[36:37]\nv_mov_b32 v{ONE+r}, 0x3f803f80")
    for t in range(10):
        for src, dst in ((KA+4*t, KP+2*t), (VA+4*t, VP+2*t)) + (((QA+4*t, QP+2*t),) if t < 8 else ()):
            a(f"v_cvt_pk_bf16_f32 v{dst}, v{src}, v{src+1}\nv_cvt_pk_bf16_f32 v{dst+1}, v{src+2}, v{src+3}")
    SC, SP, PB = 20, 52, 84
    U = [(p, j) for p in range(2) for j in range(4)]
    for u, (p, j) in enumerate(U):
        q = vr(QP+2*u, 2)
        a(f"v_mfma_f32_16x16x16_bf16 {vr(SC+4*u,4)}, {vr(KP+2*(p*5+j+1),2)}, {q}, {vr(MC,4)}")
        a(f"v_mfma_f32_16x16x16_bf16 {vr(SP+4*u,4)}, {vr(KP+2*(p*5+j),2)}, {q}, {vr(MP0 if j == 0 else MP,4)}")
    a(f"s_mov_b32 s32, {hx(f2u(0.25 * LOG2E))}")
    for u in range(8):
        for r in range(4): a(f"v_max_f32 v{SC+4*u+r}, v{SC+4*u+r}, v{SP+4*u+r}")
    for u in range(8): a(f"v_max3_f32 v{MX+u}, v{SC+4*u}, v{SC+4*u+1}, v{SC+4*u+2}")
    for u in range(8): a(f"v_max_f32 v{MX+u}, v{MX+u}, v{SC+4*u+3}")
    for sw in ("v_permlane16_swap_b32", "v_permlane32_swap_b32"):
        for u in range(8): a(f"v_mov_b32 v{MT+u}, v{MX+u}")
        for u in range(8): a(f"{sw} v{MX+u}, v{MT+u}")
        for u in range(8): a(f"v_max_f32 v{MX+u}, v{MX+u}, v{MT+u}")
    for u in range(8): a(f"v_mul_f32 v{MX+u}, s32, v{MX+u}")
    for u in range(8):
        for r in range(4): a(f"v_fma_f32 v{SC+4*u+r}, v{SC+4*u+r}, s32, -v{MX+u}")
    for u in range(8):
        for r in range(4): a(f"v_exp_f32 v{SC+4*u+r}, v{SC+4*u+r}")
    for u in range(8):
        a(f"v_cvt_pk_bf16_f32 v{SP+2*u}, v{SC+4*u}, v{SC+4*u+1}\nv_cvt_pk_bf16_f32 v{SP+2*u+1}, v{SC+4*u+2}, v{SC+4*u+3}")
    for u in range(8):
        for q in range(2):
            a(f"v_and_b32 v{PB+4*u+q}, v{AP+q}, v{SP+2*u+q}\nv_and_b32 v{PB+4*u+2+q}, v{AC+q}, v{SP+2*u+q}")
    OA, LA = 20, 52
    for u, (p, j) in enumerate(U):
        a(f"v_mfma_f32_16x16x32_bf16 {vr(LA+4*u,4)}, {vr(ONE,4)}, {vr(PB+4*u,4)}, 0")
        a(f"v_mfma_f32_16x16x32_bf16 {vr(OA+4*u,4)}, {vr(VP+2*(p*5+j),4)}, {vr(PB+4*u,4)}, 0")
    a(f"""
    s_lshl_b32 s34, s21, 7
    s_lshl_b32 s35, s22, 1
    s_add_u32 s34, s34, s35
    s_lshr_b32 s35, s29, 1
    s_add_u32 s34, s34, s35
    s_lshl_b32 s34, s34, 10
    s_and_b32 s35, s29, 1
    s_lshl_b32 s35, s35, 3
    s_add_u32 s34, s34, s35
    s_add_u32 s34, s34, {OB}
    v_lshlrev_b32 v4, 4, v1
    """)
    tag_get(a, NC)
    for u in range(8): a(f"v_rcp_f32 v{LA+4*u}, v{LA+4*u}")
    for u, (p, j) in enumerate(U):
        for q in range(2): a(f"v_pk_mul_f32 {vr(OA+4*u+2*q,2)}, {vr(OA+4*u+2*q,2)}, {vr(LA+4*u,2)} op_sel_hi:[1,0]")
        a(f"v_cvt_pk_bf16_f32 v{OA+4*u}, v{OA+4*u}, v{OA+4*u+1}\nv_cvt_pk_bf16_f32 v{OA+4*u+1}, v{OA+4*u+2}, v{OA+4*u+3}")
        a(f"s_add_u32 s35, s34, {(2*j+p)*16*1024}\nbuffer_store_dwordx2 {vr(OA+4*u,2)}, v4, s[12:15], s35 offen {STF}")
    a(f"""
    s_lshl_b32 s34, s21, 5
    s_lshl_b32 s35, s22, 2
    s_add_u32 s34, s34, s35
    s_add_u32 s34, s34, s29
    s_lshl_b32 s34, s34, 3
    s_add_u32 s50, s34, {FLG + 0x2000}
    v_mov_b32 v{NC}, s62
    v_mov_b32 v{NC+1}, s63
    """)
    z1_base()
    a("s_barrier")
    tick(a)
    a(f"s_lshl_b32 s24, s29, 12\nv_add_u32 v{XA0}, s24, v{XA0}\nv_add_u32 v{XA1}, s24, v{XA1}\nv_mov_b32 v{SUM+2}, 0\nv_mov_b32 v{SUM+4}, 0\ns_mov_b32 s49, 2")

    a.label("f_join")
    ZA, CZ = 8, 14
    ZP = 204
    a(f"v_lshlrev_b32 v4, 4, v1\ns_add_u32 s48, s48, {FLG + 0x1000}")
    for p in range(2):
        for r in range(0, 28, 2): a(f"v_pk_mov_b32 {vr(AC2+p*28+r,2)}, {vr(SUM+2+2*p,2)}, {vr(SUM+2+2*p,2)}")
    def g_reads(F, kk):
        cx = CX0 if kk == 0 else CX1
        out = [f"ds_read_b128 {vr(F+4*p,4)}, v{cx} offset:{p*2048}" for p in range(2)]
        for n in range(7): out.append(f"ds_read_b128 {vr(F+8+4*n,4)}, v{CZ} offset:{kk*7168 + n*1024}")
        return out
    def g_setaddr(): return [f"v_add_u32 v{CX0}, s31, v{XA0}", f"v_add_u32 v{CX1}, s31, v{XA1}", f"v_add_u32 v{CZ}, s46, v4"]
    gadv = ["s_add_u32 s31, s31, 16384", f"s_cmp_eq_u32 s31, {WE}", f"s_cselect_b32 s31, {WB}, s31", "s_add_u32 s46, s46, 16384", "s_and_b32 s46, s46, 0xffff",
            "s_cmp_eq_u32 s30, s49", "s_cbranch_scc1 f_hook", "f_hookr:"]
    tick(a)
    a(f"s_mov_b32 s31, {WB + 4*16384}\ns_mov_b32 s46, 0")
    cons_loop(a, "f_g2loop", 16, 0, 0, FX, FY, g_reads, lambda F: m_mfma(F, AC2, True), g_setaddr, True, False, bpos=2, lat=5, adv=gadv)
    tick(a)
    a(f"""
    s_lshl_b32 s34, s21, 1
    s_lshr_b32 s35, s29, 1
    s_add_u32 s34, s34, s35
    s_lshl_b32 s34, s34, 3
    s_add_u32 s34, s34, s22
    s_lshl_b32 s34, s34, 1
    s_add_u32 s34, s34, s27
    s_lshl_b32 s34, s34, 1
    s_and_b32 s35, s29, 1
    s_add_u32 s34, s34, s35
    s_lshl_b32 s36, s34, 3
    s_add_u32 s36, s36, {FLG + 0x3000}
    s_mul_i32 s34, s34, 7168
    s_add_u32 s34, s34, {HB}
    s_add_u32 s35, s34, 4096
    """)
    a("s_cmp_eq_u32 s27, 0\ns_cbranch_scc1 f_nunp\ns_waitcnt vmcnt(0)")
    for r in range(28): a(f"v_lshlrev_b32 v{AC1+2*r}, 16, v{ZP+r}\nv_and_b32 v{AC1+2*r+1}, 0xffff0000, v{ZP+r}")
    a.label("f_nunp")
    blocks = [(p*28 + m*8, p*3 + m) for p in range(2) for m in range(3)]
    for b, k in blocks:
        for q in range(4): a(f"v_pk_mul_f32 {vr(AC2+b+2*q,2)}, {vr(AC2+b+2*q,2)}, {vr(AC1+b+2*q,2)}")
        for q in range(4): a(f"v_cvt_pk_bf16_f32 v{FX+4*k+q}, v{AC2+b+2*q}, v{AC2+b+2*q+1}")
        a(f"buffer_store_dwordx4 {vr(FX+4*k,4)}, v4, s[12:15], s{34+(k>>2)} offen offset:{(k&3)*1024} {STF}")
    for p in range(2):
        for q in range(2):
            b = p*28 + 24 + 2*q
            a(f"v_pk_mul_f32 {vr(AC2+b,2)}, {vr(AC2+b,2)}, {vr(AC1+b,2)}")
    for p in range(2):
        for q in range(2):
            b = p*28 + 24 + 2*q
            a(f"v_cvt_pk_bf16_f32 v{FX+24+2*p+q}, v{AC2+b}, v{AC2+b+1}")
    a(f"buffer_store_dwordx4 {vr(FX+24,4)}, v4, s[12:15], s35 offen offset:2048 {STF}")
    AO = 20; AH = 36; AH6 = 52; GV = 68; OX = 72
    WA3, CH, CW3 = 8, 12, 14
    srd(a, 4, 82, 2048*1024)
    a(f"""
    s_and_b32 s28, s29, 1
    s_lshr_b32 s29, s29, 1
    s_lshl_b32 s33, s44, 2
    s_lshl_b32 s24, s28, 1
    s_add_u32 s33, s33, s24
    s_lshl_b32 s24, s28, 12
    v_add_u32 v{CH}, s24, v4
    s_lshl_b32 s25, s29, 1
    v_mov_b32 v{NC}, s62
    v_mov_b32 v{NC+1}, s63
    """)
    tr_addr(a, WA3, 2, 0, 2, "s25")
    a("s_barrier")
    OS = [72, 104]
    def o_reads(k):
        F = OS[k & 1]; out = []
        for e in range(2):
            for t in range(2): out.append(f"ds_read_b128 {vr(F+(t*2+e)*4,4)}, v{CH} offset:{(k&3)*16384 + t*2048 + e*1024}")
            for d in range(2):
                for h in range(2): out.append(f"ds_read_b64_tr_b16 {vr(F+16+(e*2+d)*4+2*h,2)}, v{WA3+d} offset:{(k&3)*16384 + 8192 + e*4096 + h*2048}")
        return out
    def o_mf(k):
        F = OS[k & 1]
        return [f"v_mfma_f32_16x16x32_bf16 {vr(AO+(t*2+d)*4,4)}, {vr(F+16+(e*2+d)*4,4)}, {vr(F+(t*2+e)*4,4)}, {vr(AO+(t*2+d)*4,4)}"
                for e in range(2) for t in range(2) for d in range(2)]
    for x in o_reads(0): a(x)
    for r in range(0, 48, 2): a(f"v_pk_mov_b32 {vr(AO+r,2)}, 0, 0")
    tick(a)
    a("s_mov_b32 s30, 0")
    seq = []
    for k in range(4):
        fill = o_reads(k + 1)
        if k == OFL: seq += ["s_cmp_eq_u32 s30, 0", "s_cbranch_scc1 f_ohook", "f_ohookr:"]
        if k == 3: seq += ["s_add_u32 s30, s30, 1", "s_cmp_eq_u32 s30, 2"]
        seq.append("BAR")
        for j, m in enumerate(o_mf(k)):
            seq.append(m)
            for _ in range(2):
                if fill: seq.append(fill.pop(0))
    a.raw(".p2align 3")
    a.label("f_oloop")
    for x in add_waits(seq, [["s_barrier"]]*3 + [["s_cbranch_scc1 f_oloop_nb", "s_barrier", "f_oloop_nb:"]], check=False): a(x)
    a("s_cbranch_scc0 f_oloop\ns_waitcnt lgkmcnt(0)")
    tick(a)
    HS = [72, 100]; WS = [128, 156]
    def h_reads(k):
        return [f"ds_read_b128 {vr(HS[k&1]+4*j,4)}, v{CH} offset:{(k&3)*16384 + j*1024}" for j in (0, 3, 1, 4, 2, 5, 6)]
    def w_reads(sl):
        out = []
        for m in range(3):
            for d in range(2):
                for h in range(2): out.append(f"ds_read_b64_tr_b16 {vr(WS[sl]+(d*3+m)*4+2*h,2)}, v{CW3+d} offset:{m*4096 + h*2048}")
        for d in range(2): out.append(f"ds_read_b64_tr_b16 {vr(WS[sl]+24+2*d,2)}, v{CW3+d} offset:{3*4096}")
        return out
    def h_mf(k):
        H = HS[k&1]; W = WS[k>>1]; out = []
        for m in range(3):
            for t in range(2):
                for d in range(2):
                    dd = vr(AH+(t*2+d)*4, 4)
                    out.append(f"v_mfma_f32_16x16x32_bf16 {dd}, {vr(W+(d*3+m)*4,4)}, {vr(H+(t*3+m)*4,4)}, {dd}")
        for t in range(2):
            for d in range(2):
                dd = vr(AH6+(t*2+d)*4, 4)
                out.append(f"v_mfma_f32_16x16x16_bf16 {dd}, {vr(W+24+2*d,2)}, {vr(H+24+2*t,2)}, {dd}")
        return out
    wadv = ["s_add_u32 s46, s46, 16384", f"s_cmp_eq_u32 s46, {WE}", f"s_cselect_b32 s46, {WB}, s46", f"v_add_u32 v{CW3}, s46, v{WA3}", f"v_add_u32 v{CW3+1}, s46, v{WA3+1}"]
    a(f"""
    s_mul_i32 s24, s28, 7168
    s_add_u32 s24, s24, {ZB}
    v_add_u32 v{CH}, s24, v4
    s_mov_b32 s46, {WB + 2*16384}
    v_add_u32 v{CW3}, s46, v{WA3}
    v_add_u32 v{CW3+1}, s46, v{WA3+1}
    """)
    for x in w_reads(0): a(x)
    for x in wadv: a(x)
    a("s_barrier")
    tick(a)
    for x in h_reads(0): a(x)
    a("s_mov_b32 s30, 0\ns_waitcnt lgkmcnt(0)")
    seq = []
    for k in range(4):
        mf = h_mf(k)
        wr = w_reads(1 - (k >> 1))
        fill = h_reads(k + 1) + (wr[:7] if k % 2 == 0 else wr[7:])
        if k % 2 == 1: fill.append(wadv)
        if k == 3: pre = ["s_add_u32 s30, s30, 1", "s_cmp_eq_u32 s30, 4"]
        hregs = set(f"v{r}" for r in range(HS[k&1], HS[k&1]+28))
        for j, m in enumerate(mf):
            if j == 1:
                if k == 3: seq += pre
                seq.append(("BARW", hregs))
            seq.append(m)
            if j >= 1 and fill:
                x = fill.pop(0)
                seq += x if isinstance(x, list) else [x]
        assert not fill
    seq.append("s_cmp_eq_u32 s30, 4")
    a.raw(".p2align 3")
    a.label("f_hloop")
    for x in add_waits(seq, [["s_barrier"]]*3 + [["s_cbranch_scc1 f_hloop_nb", "s_barrier", "f_hloop_nb:"]], check=False): a(x)
    a("s_cbranch_scc0 f_hloop\ns_waitcnt lgkmcnt(0)")
    tick(a)
    a(f"""
    s_lshr_b32 s24, s33, 1
    s_lshl_b32 s24, s24, 15
    s_lshl_b32 s25, s45, 7
    s_add_u32 s24, s24, s25
    s_lshl_b32 s25, s29, 6
    s_add_u32 s24, s24, s25
    v_lshlrev_b32 v7, 11, v2
    v_and_b32 v8, 1, v3
    v_lshl_add_u32 v7, v8, 5, v7
    v_lshrrev_b32 v8, 1, v3
    v_lshl_add_u32 v7, v8, 4, v7
    s_waitcnt vmcnt(0)
    """)
    for q in range(8): a(f"v_pk_add_f32 {vr(AH+2*q,2)}, {vr(AH+2*q,2)}, {vr(AH6+2*q,2)}")
    for q in range(8): a(f"v_pk_add_f32 {vr(AO+2*q,2)}, {vr(AO+2*q,2)}, {vr(AH+2*q,2)} neg_lo:[0,1] neg_hi:[0,1]")
    for q in range(8): a(f"v_pk_fma_f32 {vr(AO+2*q,2)}, {vr(AO+2*q,2)}, {vr(GV+2*(q>>2),2)}, {vr(AH+2*q,2)} op_sel_hi:[1,0,1]")
    for q in range(8): a(f"v_cvt_pk_bf16_f32 v{OX+q}, v{AO+2*q}, v{AO+2*q+1}")
    for t in range(2):
        a(f"v_permlane16_swap_b32 v{OX+t*4}, v{OX+t*4+2}\nv_permlane16_swap_b32 v{OX+t*4+1}, v{OX+t*4+3}")
        a(f"buffer_store_dwordx4 {vr(OX+t*4,4)}, v7, s[4:7], s24 offen offset:{t*1024}")
    tick_end(a)
    a("s_endpgm")
    a(f"""
f_ohook:
    s_waitcnt vmcnt(0)
    s_mov_b64 exec, 1
    buffer_store_dwordx2 {vr(NC,2)}, off, s[12:15], s36 sc0 sc1
    s_mov_b64 exec, -1
    s_lshl_b32 s24, s33, 6
    s_add_u32 s24, s24, {GATE}
    v_lshlrev_b32 v7, 2, v2
    buffer_load_dword v{GV}, v7, s[12:15], s24 offen {LDF}
    buffer_load_dword v{GV+2}, v7, s[12:15], s24 offen offset:64 {LDF}
    """)
    tick(a)
    a("s_branch f_ohookr")
    a(f"""
f_hook:
    s_cmp_gt_u32 s49, 3
    s_cbranch_scc1 f_hook1
    s_cmp_eq_u32 s27, 0
    s_cselect_b32 s50, s48, s50
    s_cselect_b32 s49, 99, 8
    s_waitcnt vmcnt(0)
    s_mov_b64 exec, 1
    buffer_store_dwordx2 {vr(NC,2)}, off, s[12:15], s50 sc0 sc1
    s_mov_b64 exec, -1
    s_branch f_hookr
f_hook1:
    s_cmp_eq_u32 s49, 8
    s_cbranch_scc0 f_hook2
    s_mov_b32 s49, 11
    buffer_load_dwordx2 {vr(232,2)}, off, s[12:15], s48 sc0 sc1
    s_branch f_hookr
f_hook2:
    s_waitcnt vmcnt(0)
    v_cmp_ne_u64 vcc, s[62:63], {vr(232,2)}
    s_cbranch_vccz f_hook3
    v_mov_b32 v234, s48
    """)
    flag_poll(a, 234, 232)
    a.label("f_hook3")
    for m in range(7): a(f"buffer_load_dwordx4 {vr(ZP+4*m,4)}, v4, s[12:15], s{60+(m>>2)} offen offset:{(m&3)*1024} {LDF}")
    a("s_branch f_hookr")

    a.label("f_load")
    a("s_setprio 3")
    rowtile_voff(a, 8, 29, 10, 6, 7)
    def w_voff(stride):
        a(f"""
        v_lshrrev_b32 v7, 3, v1
        s_lshl_b32 s24, s29, 3
        v_add_u32 v7, s24, v7
        s_movk_i32 s24, {stride}
        v_mul_lo_u32 v7, v7, s24
        v_bfe_u32 v6, v1, 4, 1
        s_and_b32 s24, s29, 1
        s_lshl_b32 s24, s24, 1
        v_or_b32 v6, s24, v6
        v_bfe_u32 v9, v1, 1, 2
        v_xor_b32 v6, v6, v9
        v_and_b32 v9, 1, v1
        v_lshl_or_b32 v9, v6, 1, v9
        v_lshl_add_u32 v9, v9, 4, v7
        """)
    a("s_lshl_b32 s32, s21, 17\ns_lshl_b32 s34, s29, 10\ns_mov_b32 s30, 0\ns_mov_b32 s31, 0\ns_cmp_eq_u32 s27, 1\ns_cbranch_scc1 f_aload")
    srd(a, 8, 72, 512*3584)
    w_voff(3584)
    a("v_cmp_eq_u32 vcc, 3, v6\nv_bfrev_b32 v7, 1\ns_mul_i32 s33, s22, 224\nv_cndmask_b32 v10, v9, v7, vcc")
    LP = LoaderProg(a)
    nxt = 0
    for s in range(16):
        hi = min(15, s + 1 if s <= 8 else s + 2)
        while nxt <= hi:
            LP.call("f_mi", 8, nxt); nxt += 1
            if nxt == 1: a("s_call_b64 s[56:57], f_lsetup")
        if s == 8:
            LP.bar()
            while nxt <= 11: LP.call("f_mi", 8, nxt); nxt += 1
            tag_load(a, 20); LP.extra(1)
            LP.call("f_lw", 4, "w"); LP.call("f_lw", 4, "w")
        LP.bar(s)
    LP.bar()
    LP.call("f_lw", 4, "w"); LP.call("f_lw", 4, "w")
    a("s_branch f_ltail")
    a.label("f_aload")
    srd(a, 8, 66, 512*3072)
    w_voff(3072)
    a("s_sub_u32 s33, s32, 32768\ns_max_i32 s33, s33, 0\ns_lshl_b32 s54, s22, 7")
    LP = LoaderProg(a)
    LP.call("f_ai", 11, 0)
    a("s_call_b64 s[56:57], f_lsetup")
    a(f"""
    s_lshr_b32 s35, s2, 1
    s_lshl_b32 s35, s35, 2
    s_add_u32 s35, s35, s29
    s_lshl_b32 s36, s35, 14
    v_lshlrev_b32 v26, 12, v3
    v_lshl_add_u32 v26, v2, 7, v26
    v_add_u32 v26, s36, v26
    s_cmp_lt_u32 s35, 64
    s_cselect_b32 s88, s68, s78
    s_cselect_b32 s89, s69, s79
    s_cselect_b32 s37, 0, 64
    s_sub_u32 s35, s35, s37
    s_min_u32 s37, s35, 111
    s_lshl_b32 s37, s37, 13
    v_lshlrev_b32 v27, 7, v1
    v_add_u32 v27, s37, v27
    s_cmp_lt_u32 s35, 112
    s_cselect_b64 s[60:61], -1, 1
    """)
    nxt = 1
    for s in range(8):
        while nxt <= min(7, s + 1): LP.call("f_ai", 11, nxt); nxt += 1
        if s == TOUCH1:
            a("global_load_dword v30, v26, s[74:75]"); LP.extra(1)
        if s == 7:
            tag_load(a, 20)
            a("global_load_dword v31, v26, s[74:75] offset:2048\ns_mov_b64 exec, s[60:61]\nglobal_load_dword v32, v27, s[88:89]\ns_mov_b64 exec, -1")
            LP.extra(3)
        LP.bar(s)
    LP.bar()
    for c in range(4): LP.call("f_lw", 4, "w")
    LP.bar()
    a.label("f_ltail")
    srd(a, 8, 68, 512*1024)
    tag_get(a, 20)
    LP = LoaderProg(a)
    wg_poll(a, 16, 20, 2, RELW)
    ltick(a)
    def zone(n):
        if n < 16: LP.call("f_lz", 3, n)
        elif n < 24: LP.call("f_lo", 4, n)
        else: LP.call("f_lh", 3, n)
    for c in range(3): zone(c)
    wn = 4
    def wring_issue():
        nonlocal wn
        LP.call("f_lw" if wn < 16 else "f_lwo", 4 if wn < 16 else 3, ("w", wn)); wn += 1
    for n in range(40):
        need = [n]
        if n < 16: need.append(("w", n))
        if n == 23: need.append(("w", 16))
        if n >= 24: need.append(("w", 16 + (n - 24 + 1) // 2))
        if n == 24:
            wg_poll(a, 17, 20, 4, WB + 2*16384 + 15360); LP.drained()
            ltick(a)
            for c in range(24, 27): zone(c)
        LP.bar(*need)
        if n == 12:
            L = a.newlabel("of")
            a(f"v_cmp_ne_u64 vcc, s[62:63], v[28:29]\ns_cbranch_vccz {L}")
            flag_poll(a, 18, 28)
            a.label(L)
        if n + 3 < 40 and not (21 <= n < 24): zone(n + 3)
        if n == 7:
            a("buffer_load_dwordx2 v[28:29], v18, s[12:15], 0 offen sc0 sc1"); LP.extra(1)
        for _ in range(WSCHED.get(n, 0)):
            if wn - 6 < 16: assert n >= wn - 5, (n, wn)
            else: assert n >= 24 + 2*(wn - 6 - 16) + 2, (n, wn)
            wring_issue()
        if n < 15: assert wn > n + 1, (n, wn)
    assert wn == 24
    ltick(a)
    tick_end(a)
    a("s_endpgm")
    a.label("f_lsetup")
    srd(a, 96, 74, 2048*4096)
    srd(a, 16, 78, 896*1024)
    rowtile_voff(a, 11, 29, 12, 6, 7)
    a(f"""
    v_lshlrev_b32 v12, 4, v1
    s_lshl_b32 s70, s23, 1
    s_lshl_b32 s71, s21, 19
    s_lshl_b32 s24, s27, 11
    s_add_u32 s71, s71, s24
    s_lshl_b32 s76, s22, 6
    s_lshl_b32 s24, s27, 5
    s_add_u32 s76, s76, s24
    s_lshl_b32 s50, s76, 3
    s_mul_i32 s76, s76, 7168
    s_lshl_b32 s77, s29, 12
    s_cmp_eq_u32 s29, 3
    s_cselect_b32 s77, {11*1024}, s77
    s_add_u32 s76, s76, s77
    s_add_u32 s76, s76, {Z2N}
    s_mov_b32 s80, 0
    s_mov_b32 s81, {WB + 4*16384}
    s_mov_b32 s46, 0
    s_mov_b32 s51, 0
    s_lshl_b32 s52, s44, 2
    s_add_u32 s52, s52, s29
    s_lshl_b32 s52, s52, 14
    s_add_u32 s52, s52, {OB}
    s_mul_i32 s53, s44, {16*14336}
    s_add_u32 s53, s53, s77
    s_add_u32 s53, s53, {HB}
    s_and_b32 s24, s44, 3
    s_lshl_b32 s24, s24, 1
    s_add_u32 s43, s45, s24
    s_and_b32 s43, s43, 7
    s_mov_b32 s42, s43
    s_lshl_b32 s55, s43, 1
    v_lshrrev_b32 v7, 3, v1
    s_lshl_b32 s24, s29, 3
    v_add_u32 v13, s24, v7
    v_lshlrev_b32 v13, 10, v13
    v_bfe_u32 v5, v1, 1, 2
    v_xor_b32 v6, v3, v5
    v_and_b32 v4, 1, v1
    v_lshl_or_b32 v6, v6, 1, v4
    v_lshl_add_u32 v13, v6, 4, v13
    s_lshl_b32 s25, s45, 7
    v_add_u32 v13, s25, v13
    v_and_b32 v6, 31, v1
    v_lshlrev_b32 v6, 3, v6
    s_add_u32 s50, s50, {FLG}
    v_add_u32 v16, s50, v6
    s_lshl_b32 s24, s44, 8
    s_add_u32 s24, s24, {FLG + 0x3000}
    v_add_u32 v17, s24, v6
    s_lshr_b32 s24, s44, 1
    s_lshl_b32 s24, s24, 8
    s_add_u32 s24, s24, {FLG + 0x2000}
    v_add_u32 v18, s24, v6
    s_setpc_b64 s[56:57]
    """)
    a.label("f_mi")
    a(f"""
    s_add_u32 s35, s30, s23
    s_and_b32 s35, s35, 7
    s_lshl_b32 s36, s35, 7
    s_add_u32 s36, s36, s32
    s_mul_i32 s37, s35, {64*3584}
    s_add_u32 s37, s37, s33
    s_cmp_lt_u32 s30, 8
    s_cselect_b32 s38, 1792, 0
    s_add_u32 s37, s37, s38
    s_add_u32 s38, s30, 2
    s_and_b32 s38, s38, {M_R-1}
    s_lshl_b32 s38, s38, 15
    s_add_u32 s38, s38, s34
    s_add_u32 s30, s30, 1
    """)
    for b in range(4):
        a(f"s_add_u32 m0, s38, {b*4096}\ns_add_u32 s39, s36, {b*32768}\nbuffer_load_dwordx4 v8, s[4:7], s39 offen lds")
    for gq in range(2):
        for hi in range(2):
            a(f"s_add_u32 m0, s38, {M_XB + gq*8192 + hi*4096}\ns_add_u32 s39, s37, {hi*32*3584 + gq*128}\nbuffer_load_dwordx4 v{9+gq}, s[8:11], s39 offen lds")
    a("s_setpc_b64 s[56:57]")
    a.label("f_ai")
    a(f"""
    s_add_u32 s35, s30, s23
    s_and_b32 s35, s35, 7
    s_lshl_b32 s36, s35, 7
    s_mul_i32 s37, s35, {64*3072}
    s_add_u32 s37, s37, s54
    s_add_u32 s38, s31, s34
    s_add_u32 s31, s31, {A_ST}
    s_cmp_eq_u32 s31, {A_ST*A_R}
    s_cselect_b32 s31, 0, s31
    s_add_u32 s30, s30, 1
    s_mov_b32 m0, s38
    s_add_u32 s39, s36, s33
    buffer_load_dwordx4 v8, s[4:7], s39 offen lds
    s_add_u32 s36, s36, s32
    """)
    for b in range(1, 5):
        a(f"s_add_u32 m0, s38, {b*4096}\ns_add_u32 s39, s36, {(b-1)*32768}\nbuffer_load_dwordx4 v8, s[4:7], s39 offen lds")
    for gq in range(3):
        for hi in range(2):
            a(f"s_add_u32 m0, s38, {A_XB + gq*8192 + hi*4096}\ns_add_u32 s39, s37, {hi*32*3072 + gq*1024}\nbuffer_load_dwordx4 v9, s[8:11], s39 offen lds")
    a("s_setpc_b64 s[56:57]")
    wring = f"s_add_u32 s81, s81, 16384\ns_cmp_eq_u32 s81, {WE}\ns_cselect_b32 s81, {WB}, s81"
    a.label("f_lw")
    a(f"s_add_u32 s35, s80, s70\ns_and_b32 s35, s35, 15\ns_lshl_b32 s36, s35, 7\ns_add_u32 s36, s36, s71\ns_add_u32 s38, s81, s34\ns_add_u32 s80, s80, 1\n{wring}")
    for b in range(4):
        a(f"s_add_u32 m0, s38, {b*4096}\ns_add_u32 s39, s36, {b*32*4096}\nbuffer_load_dwordx4 v11, s[96:99], s39 offen lds")
    a("s_setpc_b64 s[56:57]")
    a.label("f_lh")
    a(f"s_mul_i32 s37, s55, 14336\ns_add_u32 s37, s37, s53\ns_add_u32 s55, s55, 1\ns_and_b32 s55, s55, 15\ns_branch f_lin")
    a.label("f_lz")
    a(f"s_add_u32 s35, s51, s70\ns_and_b32 s35, s35, 15\ns_mul_i32 s37, s35, 14336\ns_add_u32 s37, s37, s76\ns_add_u32 s51, s51, 1")
    a.label("f_lin")
    a(f"s_add_u32 m0, s46, s77\ns_add_u32 s46, s46, 16384\ns_and_b32 s46, s46, 0xffff\ns_cmp_ge_u32 s29, 2")
    for n in range(3): a(f"buffer_load_dwordx4 v12, s[12:15], s37 offen offset:{n*1024} {LDF} lds")
    a(f"s_cbranch_scc1 f_lin3\nbuffer_load_dwordx4 v12, s[12:15], s37 offen offset:3072 {LDF} lds")
    a.label("f_lin3")
    a("s_setpc_b64 s[56:57]")
    a.label("f_lwo")
    a(f"s_mul_i32 s37, s43, {112*1024}\ns_add_u32 s43, s43, 1\ns_and_b32 s43, s43, 7\ns_add_u32 s38, s81, s34\n{wring}")
    for q in range(3): a(f"s_add_u32 m0, s38, {q*4096}\ns_add_u32 s39, s37, {q*32768}\nbuffer_load_dwordx4 v13, s[16:19], s39 offen lds")
    a(f"s_cmp_ge_u32 s29, 2\ns_cbranch_scc1 f_lin3\ns_add_u32 m0, s38, {3*4096}\ns_add_u32 s39, s37, {3*32768}\nbuffer_load_dwordx4 v13, s[16:19], s39 offen lds\ns_setpc_b64 s[56:57]")
    a.label("f_lo")
    a(f"""
    s_lshl_b32 s24, s42, 16
    s_lshl_b32 s36, s42, 11
    s_add_u32 s36, s36, s52
    s_add_u32 s42, s42, 1
    s_and_b32 s42, s42, 7
    s_lshl_b32 s35, s34, 1
    s_add_u32 m0, s46, s35
    s_add_u32 s35, s46, s34
    s_add_u32 s46, s46, 16384
    s_and_b32 s46, s46, 0xffff
    """)
    for n in range(2): a(f"buffer_load_dwordx4 v12, s[12:15], s36 offen offset:{n*1024} {LDF} lds")
    for q in range(2): a(f"s_add_u32 m0, s35, {8192 + q*4096}\ns_add_u32 s25, s24, {q*32768}\nbuffer_load_dwordx4 v13, s[8:11], s25 offen lds")
    a("s_setpc_b64 s[56:57]")
    a.label("fk_end")
    a("s_endpgm")

def STAMP_GROUPS(wg):
    mlp = (wg & 1) == 0
    return [("mlp", 0, mlp, slice(0,4)), ("mload", 0, mlp, slice(4,8)), ("attn", 0, ~mlp, slice(0,4)), ("aload", 0, ~mlp, slice(4,8))]

HEADER = open("gated_mix__sliding_local_dilated__mixer_gmlp__prompt.s.ref").read().split("; Override launch")[0]

def gen1(stamps=False):
    global STAMPS
    STAMPS = stamps
    a = Asm()
    for l in HEADER.strip().split("\n"): a.raw(l)
    a.raw(f"; @launch grid=(256,1,1) block=(512,1,1) lds={LDS_BYTES}")
    a.raw('.amdgcn_target "amdgcn-amd-amdhsa--gfx950"')
    gen_fused(a)
    a.raw(kernel_desc(KNAME, 256))
    return a.text()

def gen(stamps=False):
    global CODE_BYTES
    import subprocess, re
    t = gen1(stamps)
    open("_g.s", "w").write(t)
    subprocess.run(["clang", "-x", "assembler", "-target", "amdgcn-amd-amdhsa", "-mcpu=gfx950", "-c", "_g.s", "-o", "_g.o"], check=True)
    h = subprocess.run(["llvm-objdump", "-h", "_g.o"], capture_output=True, text=True).stdout
    CODE_BYTES = int(re.search(r"\.text\s+([0-9a-f]+)", h).group(1), 16) - 4
    return gen1(stamps)

if __name__ == "__main__":
    out = sys.argv[1] if len(sys.argv) > 1 else "gated_mix__sliding_local_dilated__mixer_gmlp__prompt.s"
    open(out, "w").write(gen("--stamps" in sys.argv))
    print("code bytes", hex(CODE_BYTES))
```

```python
import gen, asmlib, sys, re
def probe(A, B, name):
    s = gen.gen(True)
    lines = s.split("\n")
    idx = [i for i,l in enumerate(lines) if l.startswith("; @launch")][0]
    lines[idx] = lines[idx].replace("@launch grid", f"@launch kernel={gen.KNAME} grid")
    e = "; @launch kernel=rep_kernel grid=(1,1,1) block=(64,1,1) lds=0"
    lines = lines[:idx+1] + [e] + lines[idx+1:]
    t = "\n".join(lines)
    a = asmlib.Asm()
    asmlib.kernel_begin(a, "rep_kernel")
    a("s_cmp_ge_u32 s2, 1\ns_cbranch_scc1 rep_end\ns_load_dwordx4 s[4:7], s[0:1], 80\ns_memrealtime s[10:11]\ns_waitcnt lgkmcnt(0)")
    def off(x): wg, w, j = x; return gen.STMP + (wg*16+w)*256 + j*4
    a(f"v_mov_b32 v8, s10\nv_mov_b32 v9, s10")
    if A: a(f"v_mov_b32 v2, {off(A)}\nglobal_load_dword v8, v2, s[6:7]")
    if B: a(f"v_mov_b32 v2, {off(B)}\nglobal_load_dword v9, v2, s[6:7]")
    a("s_waitcnt vmcnt(0)\nv_sub_u32 v9, v9, v8\nv_min_u32 v9, 0x4000, v9\ns_nop 1\nv_readfirstlane_b32 s12, v9\ns_memrealtime s[10:11]\ns_waitcnt lgkmcnt(0)\ns_add_u32 s12, s12, s10")
    a("rep_spin:\ns_memrealtime s[14:15]\ns_waitcnt lgkmcnt(0)\ns_sub_u32 s16, s14, s12\ns_cmp_lt_i32 s16, 0\ns_cbranch_scc1 rep_spin")
    a("rep_end:\ns_endpgm")
    t += a.text() + asmlib.kernel_desc("rep_kernel", 32)
    open(name, "w").write(t)
if __name__ == "__main__":
    pts = [int(x) for x in sys.argv[1:]]
    probe((16,0,0), (16,0,0), "p0.s")
    probe((16,0,0), None, "p1.s")
    for n, j in enumerate(pts): probe((16,0,0), (16,0,j), f"p{n+2}.s")
```

```python
import sys, struct
from asmlib import *

def f2u(x): return struct.unpack("<I", struct.pack("<f", x))[0]
def hx(x): return "0x%08x" % (x & 0xffffffff)

Z2N = 0x0000000
Z1  = 0x0380000
OB  = 0x0700000
HB  = 0x0900000
GATE= 0x1000000
MBOX= 0x1010000
FLG = 0x1050000
AB  = 0x0d00000
STMP= 0x1060000
WS_SIZE = 0x1700000
KNAME = "gated_mix__sliding_local_dilated__mixer_gmlp__prompt_kernel"
LOG2E = 1.4426950408889634
GC1 = -2.0 * LOG2E * 0.7978845608028654
GC2 = GC1 * 0.044715
STAMPS = False
LTICK = 1
CODE_BYTES = 0x4000
STV = 254
STF = "sc0 sc1"
DP = "row_mask:0xf"
H_HAS_GATE = False

def srd(a, d, b, size):
    a(f"s_mov_b32 s{d}, s{b}\ns_and_b32 s{d+1}, s{b+1}, 0xffff\ns_mov_b32 s{d+2}, {hx(size)}\ns_mov_b32 s{d+3}, 0x20000")
def vr(b, n): return f"v[{b}:{b+n-1}]"

def tick(a):
    if not STAMPS: return
    a(f"""
    s_memrealtime s[90:91]
    s_memtime s[94:95]
    s_mov_b32 m0, s93
    s_waitcnt lgkmcnt(0)
    v_writelane_b32 v{STV}, s90, m0
    v_writelane_b32 v{STV-1}, s94, m0
    s_cselect_b32 s92, 1, 0
    s_add_u32 s93, s93, 1
    s_cmp_eq_u32 s92, 1
    """)
def ltick(a):
    if not STAMPS or not LTICK: return
    a(f"""
    s_mov_b32 m0, s93
    s_waitcnt lgkmcnt(0)
    v_writelane_b32 v{STV}, s90, m0
    v_writelane_b32 v{STV-1}, s94, m0
    s_memrealtime s[90:91]
    s_memtime s[94:95]
    s_add_u32 s93, s93, 1
    """)
def tick0(a):
    if not STAMPS: return
    a(f"s_mov_b32 s93, 1\nv_mov_b32 v{STV}, 0\ns_nop 0\nv_writelane_b32 v{STV}, s90, 0\nv_writelane_b32 v{STV-1}, s94, 0")
def tick_end(a):
    if not STAMPS: return
    tick(a)
    a(f"""
    s_lshl_b32 s92, s2, 4
    s_add_u32 s92, s92, s20
    s_lshl_b32 s92, s92, 8
    s_add_u32 s92, s92, {STMP + a.kidx*256*16*256}
    v_lshlrev_b32 v{STV+1}, 2, v1
    buffer_store_dword v{STV}, v{STV+1}, s[12:15], s92 offen
    s_add_u32 s92, s92, 0x300000
    buffer_store_dword v{STV-1}, v{STV+1}, s[12:15], s92 offen
    """)

class LoaderProg:
    def __init__(self, a): self.a = a; self.q = []
    def call(self, label, n, tag):
        self.a(f"s_call_b64 s[56:57], {label}"); self.q += [tag] * n
    def extra(self, n): self.q += [None] * n
    def drained(self): self.q = []
    def bar(self, *need, notick=False):
        idx = [i for i, x in enumerate(self.q) if x in need]
        if idx:
            n = len(self.q) - 1 - max(idx); assert n <= 63
            self.a(f"s_waitcnt vmcnt({n})")
            self.q = self.q[len(self.q) - n:] if n else []
        self.a("s_barrier")
        if not notick: ltick(self.a)

def rowtile_voff(a, dst, lw_s, stride_log, t1, t2):
    a(f"""
    s_and_b32 s24, s{lw_s}, 1
    s_lshr_b32 s25, s{lw_s}, 1
    s_lshl_b32 s26, s24, 4
    s_add_u32 s26, s26, s25
    v_lshrrev_b32 v{t1}, 3, v1
    v_lshlrev_b32 v{t1}, 1, v{t1}
    v_add_u32 v{t1}, s26, v{t1}
    v_lshlrev_b32 v{t1}, {stride_log}, v{t1}
    s_lshl_b32 s24, s24, 2
    v_lshrrev_b32 v{t2}, 4, v1
    v_add_u32 v{t2}, s24, v{t2}
    v_and_b32 v{dst}, 7, v1
    v_xor_b32 v{dst}, v{dst}, v{t2}
    v_lshl_add_u32 v{dst}, v{dst}, 4, v{t1}
    """)

def rowtile_raddr(a, dst0, dst1, t1):
    a(f"""
    v_lshrrev_b32 v{t1}, 1, v2
    v_xor_b32 v{t1}, v{t1}, v3
    v_lshlrev_b32 v{t1}, 4, v{t1}
    v_lshl_add_u32 v{dst0}, v2, 7, v{t1}
    v_xor_b32 v{dst1}, 64, v{dst0}
    """)

def interleave(a, mf, rd, tailroom=6):
    mf = list(mf); rd = list(rd)
    n = len(mf); k = 0
    lim = max(1, n - tailroom)
    for idx, m in enumerate(mf):
        a(m)
        want = min(len(rd), -(-len(rd) * (idx + 1) // lim))
        while k < want:
            a(rd[k]); k += 1
    while k < len(rd):
        a(rd[k]); k += 1

AGE = 6
def sched_body(mfA, mfB, rdY, rdX, misc_pre, bar, bpos, lat=4):
    nA, nB = len(mfA), len(mfB); G = nA + nB
    a0 = nB - bpos
    slots = [[] for _ in range(G)]
    avail = G - lat
    nx, ny = len(rdX), len(rdY)
    if nx <= a0 and ny <= avail - a0:
        for j, r in enumerate(rdX): slots[j].append(r)
        for j, r in enumerate(rdY): slots[a0 + j].append(r)
        lastr = a0 + ny - 1
    else:
        allr = list(rdX) + list(rdY); n = len(allr)
        span = min(avail, n)
        for j, r in enumerate(allr):
            g = j * span // n
            if j >= nx: g = max(g, a0)
            slots[g].append(r)
        lastr = span - 1
    m = list(misc_pre); g = lastr + 1
    per = -(-len(m) // max(1, G - g))
    per = max(per, 2)
    while m:
        for _ in range(per):
            if m: slots[min(g, G-1)].append(m.pop(0))
        g += 1
    seq = []
    for k, x in enumerate(mfA): seq.append(x); seq += slots[a0 + k]
    for k, x in enumerate(mfB):
        if k == bpos: seq.append("BAR")
        seq.append(x)
        seq += slots[k - bpos] if k >= bpos else slots[a0 + nA + k]
    return add_waits(seq, bar)

def add_waits(seq, bar, check=True, iters=2):
    out = None
    q = []; clk = 0
    nb = 0
    for it in range(iters):
        out = []; nb = 0
        for x in seq:
            if isinstance(x, tuple) or x in ("BAR", "BARN"):
                if x == "BAR":
                    if q: out.append("s_waitcnt lgkmcnt(0)")
                    q = []
                elif isinstance(x, tuple):
                    idx = [i for i, d in enumerate(q) if d[0] & x[1]]
                    if idx:
                        n = min(len(q) - 1 - max(idx), 14)
                        out.append(f"s_waitcnt lgkmcnt({n})")
                        q = q[len(q) - n:] if n else []
                out += bar[nb] if isinstance(bar[0], list) else bar
                nb += 1
                continue
            ins = Ins("    " + x)
            if ins.mfma or ins.valu:
                idx = [i for i, d in enumerate(q) if d[0] & (ins.srcAB if ins.mfma else ins.r)]
                if idx:
                    idx += [i for i, d in enumerate(q) if clk - d[1] >= AGE]
                    n = min(len(q) - 1 - max(idx), 14)
                    out.append(f"s_waitcnt lgkmcnt({n})")
                    q = q[len(q) - n:] if n else []
                if ins.mfma: clk += 1
            out.append(x)
            if ins.ds: q.append((set(ins.w), clk))
    L = [Ins("    " + x) for x in seq if not isinstance(x, tuple) and x not in ("BAR", "BARN")]
    for i, r in enumerate(L):
        if not r.ds or not check: continue
        uses = [k for k in range(1, len(L)) if L[(i + k) % len(L)].mfma and (L[(i + k) % len(L)].srcAB & r.w)]
        mfpos = [k for k in range(1, len(L)) if L[(i + k) % len(L)].mfma]
        if uses:
            span = len([k for k in mfpos if uses[0] <= k <= uses[-1]])
            assert span <= len(mfpos) // 2 + 1, f"read placed inside its use range: {r.line}"
    return out

def cons_loop(a, name, cnt, ST, R, FX, FY, reads, mfma, setaddr, first_barrier=True, last_barrier=False, bpos=3, lat=4, adv=None):
    if first_barrier:
        for x in setaddr(): a(x)
        a("s_barrier")
        tick(a)
    for x in reads(FX, 0): a(x)
    a(f"s_mov_b32 s30, 0")
    a.raw(".p2align 3")
    a.label(name)
    if adv is None: adv = [f"s_add_u32 s31, s31, {ST}", f"s_cmp_eq_u32 s31, {ST*R}", "s_cselect_b32 s31, 0, s31"]
    misc = adv + setaddr() + ["s_add_u32 s30, s30, 1", f"s_cmp_eq_u32 s30, {cnt}"]
    bar = ["s_barrier"] if last_barrier else [f"s_cbranch_scc1 {name}_nb", "s_barrier", f"{name}_nb:"]
    for x in sched_body(mfma(FX), mfma(FY), reads(FY, 1), reads(FX, 0), misc, bar, bpos, lat): a(x)
    a(f"s_cbranch_scc0 {name}")
    a("s_waitcnt lgkmcnt(0)")

def common_entry(a, nwg):
    a(f"""
    s_cmp_ge_u32 s2, {nwg}
    s_cbranch_scc1 {a.kname}_end
    v_lshrrev_b32 v4, 6, v0
    v_and_b32 v1, 63, v0
    v_and_b32 v2, 15, v0
    v_readfirstlane_b32 s20, v4
    v_lshrrev_b32 v3, 4, v1
    """)

def gelu_block(a, prs, tm, cs, cv):
    for x, t in zip(prs, tm): a(f"v_pk_mul_f32 {vr(t,2)}, {vr(x,2)}, {vr(x,2)}")
    for x, t in zip(prs, tm): a(f"v_pk_fma_f32 {vr(t,2)}, {vr(t,2)}, s[{cs}:{cs+1}], {vr(cv,2)}")
    for x, t in zip(prs, tm): a(f"v_pk_mul_f32 {vr(t,2)}, {vr(t,2)}, {vr(x,2)}")
    for t in tm: a(f"v_exp_f32 v{t}, v{t}\nv_exp_f32 v{t+1}, v{t+1}")
    for t in tm: a(f"v_pk_add_f32 {vr(t,2)}, {vr(t,2)}, 1.0 op_sel_hi:[1,0]")
    for t in tm: a(f"v_rcp_f32 v{t}, v{t}\nv_rcp_f32 v{t+1}, v{t+1}")
    for x, t in zip(prs, tm): a(f"v_pk_mul_f32 {vr(x,2)}, {vr(x,2)}, {vr(t,2)}")

def code_prefetch(a, wave, vt):
    L = a.newlabel("cpf")
    a(f"""
    s_cmp_lg_u32 s20, {wave}
    s_cbranch_scc1 {L}
    s_getpc_b64 s[58:59]
{L}p:
    s_sub_u32 s58, s58, {L}p - {KNAME}
    s_subb_u32 s59, s59, 0
    s_lshr_b32 s24, s2, 3
    s_mul_i32 s24, s24, 1536
    v_lshlrev_b32 v{vt}, 7, v1
    v_add_u32 v{vt}, s24, v{vt}
    v_min_u32 v{vt}, {hx(CODE_BYTES)}, v{vt}
    s_mov_b64 exec, 0xfff
    global_load_dword v{vt}, v{vt}, s[58:59]
    s_mov_b64 exec, -1
    """)
    a.label(L)

def tr_addr(a, WA, rowmul_log, base_expr, nslots, xor_s=None):
    a(f"""
    v_lshrrev_b32 v7, 2, v2
    v_lshl_add_u32 v18, v3, {rowmul_log}, v7
    v_lshlrev_b32 v18, 7, v18
    v_and_b32 v19, 3, v2
    v_lshl_add_u32 v18, v19, 3, v18
    v_add_u32 v18, {base_expr}, v18
    v_lshrrev_b32 v7, 3, v2
    v_and_b32 v19, 1, v3
    v_lshl_or_b32 v7, v19, 1, v7
    """)
    if xor_s: a(f"v_xor_b32 v7, {xor_s}, v7")
    a(f"v_lshl_add_u32 v{WA}, v7, 5, v18")
    for q in range(1, nslots): a(f"v_xor_b32 v{WA+q}, {q*32}, v{WA}")

A_XB = 20480; A_ST = 45056; A_R = 3
M_XB = 16384; M_ST = 32768; M_R = 4
ZB = 0
WB = 65536; WE = 163840
RELW = 3*16384 + 15360
PSLEEP = 2
LDS_BYTES = 163840
LDF = "sc1"
SPIN = "0x40000"
HK_A = 1; HK_B = 3; OFL = 2
NM = 20; NA = 12
NPOST = 8; WEND = 3
NPRE_M = 4; NPRE_A = 6
GF_LD = 16; GF_CK = 18
NWS = 4; HBAR = 2; OBAR = 3
XM_AT = {17: [0], 19: [1, 2]}
XT_A = -1; WT_A = 0; NEARLY = 2; CT = 0; MAP = 0
WO_AT = {9: [0, 1, 2, 3], 10: [4, 5, 6, 7]}
NLATE = 0
XSCHED = {3:1, 4:1, 5:1, 6:1, 7:2}
ROT1M = 0; ROT1A = 0; ROT1B = 7
HK_C = 6
TOUCH1 = 3; TOUCH = False

def tag_load(a, NC): a(f"v_mov_b32 v{NC+2}, 0\nglobal_load_dwordx2 {vr(NC+4,2)}, v{NC+2}, s[84:85] sc0 sc1")
def tag_get(a, NC):
    L = a.newlabel("tag")
    a(f"""
    s_mov_b32 s47, 0
{L}w:
    s_waitcnt vmcnt(0)
    v_readfirstlane_b32 s62, v{NC+4}
    v_readfirstlane_b32 s63, v{NC+5}
    s_add_u32 s47, s47, 1
    s_cmp_lg_u32 s62, 0
    s_cbranch_scc1 {L}k
    global_load_dwordx2 {vr(NC+4,2)}, v{NC+2}, s[84:85] sc0 sc1
    s_cmp_lt_u32 s47, {SPIN}
    s_cbranch_scc1 {L}w
{L}k:
    """)
def flag_set(a, soff, NC):
    a(f"""
    v_mov_b32 v{NC}, s62
    v_mov_b32 v{NC+1}, s63
    s_waitcnt vmcnt(0)
    s_mov_b64 exec, 1
    buffer_store_dwordx2 {vr(NC,2)}, off, s[12:15], {soff} sc0 sc1
    s_mov_b64 exec, -1
    """)
def flag_poll(a, voff, NC):
    L = a.newlabel("poll")
    a(f"""
    s_mov_b32 s47, 0
{L}w:
    buffer_load_dwordx2 {vr(NC,2)}, v{voff}, s[12:15], 0 offen sc0 sc1
    s_add_u32 s47, s47, 1
    s_waitcnt vmcnt(0)
    v_cmp_ne_u64 vcc, s[62:63], {vr(NC,2)}
    s_cmp_gt_u32 s47, {SPIN}
    s_cbranch_scc1 {L}k
    s_cbranch_vccz {L}k
    s_sleep {PSLEEP}
    s_branch {L}w
{L}k:
    """)
def wg_poll(a, voff, NC, x, RELW):
    L = a.newlabel("wp")
    a(f"s_xor_b32 s60, s62, {x}\ns_mov_b32 s61, s63\nv_mov_b32 v{NC+2}, {RELW}\ns_cmp_lg_u32 s29, 0\ns_cbranch_scc1 {L}o")
    flag_poll(a, voff, NC)
    a(f"v_mov_b32 v{NC}, s60\nv_mov_b32 v{NC+1}, s61\nds_write_b64 v{NC+2}, {vr(NC,2)}\ns_branch {L}d")
    a(f"""
{L}o:
    s_waitcnt vmcnt(0)
{L}s:
    s_sleep 1
    ds_read_b64 {vr(NC,2)}, v{NC+2}
    s_waitcnt lgkmcnt(0)
    v_cmp_ne_u64 vcc, s[60:61], {vr(NC,2)}
    s_cbranch_vccnz {L}s
{L}d:
    """)

def gen_fused(a):
    assert NM == 20 and NA == 12
    GB0 = WB + 2*16384; GB1 = WB + 3*16384
    XL = [0, 16384, 32768, 49152, WB + 4*16384, WB + 5*16384, WB, WB + 16384]
    WOL = [WB + 4*16384, WB + 5*16384, WB, WB + 16384]
    K = KNAME; a.kidx = 0; a.kname = "fk"
    kernel_begin(a, K)
    if STAMPS: a("s_memrealtime s[90:91]\ns_memtime s[94:95]")
    a("s_load_dwordx16 s[64:79], s[0:1], 0\ns_load_dwordx8 s[80:87], s[0:1], 64")
    common_entry(a, 256)
    if MAP: a("""
    s_lshr_b32 s25, s2, 3
    s_and_b32 s27, s25, 1
    s_bfe_u32 s21, s2, 0x20001
    s_lshl_b32 s21, s21, 2
    s_bfe_u32 s26, s2, 0x20004
    s_add_u32 s21, s21, s26
    s_and_b32 s22, s2, 1
    s_lshl_b32 s22, s22, 2
    s_lshr_b32 s28, s2, 6
    s_add_u32 s22, s22, s28
    s_add_u32 s23, s28, s26
    s_and_b32 s23, s23, 3
    s_lshl_b32 s23, s23, 1
    s_lshr_b32 s3, s2, 4
    s_lshl_b32 s3, s3, 3
    s_and_b32 s24, s2, 7
    s_add_u32 s3, s3, s24
    """)
    else: a("""
    s_and_b32 s27, s2, 1
    s_lshr_b32 s25, s2, 3
    s_bfe_u32 s21, s2, 0x10001
    s_lshl_b32 s21, s21, 3
    s_and_b32 s26, s25, 7
    s_add_u32 s21, s21, s26
    s_bfe_u32 s22, s2, 0x10002
    s_lshl_b32 s22, s22, 2
    s_lshr_b32 s28, s25, 3
    s_add_u32 s22, s22, s28
    s_lshl_b32 s23, s28, 1
    s_add_u32 s23, s23, s26
    s_lshr_b32 s3, s2, 1
    """)
    a("""
    s_and_b32 s44, s2, 7
    s_lshl_b32 s44, s44, 2
    s_and_b32 s24, s25, 3
    s_add_u32 s44, s44, s24
    s_lshr_b32 s45, s25, 2
    s_and_b32 s29, s20, 3
    s_mov_b32 s6, 0x200000
    s_mov_b32 s7, 0x20000
    s_cmp_lt_u32 s20, 4
    s_cbranch_scc1 f_comp
    s_setprio 3
    """)
    rowtile_voff(a, 8, 29, 10, 6, 7)
    a(f"""
    s_cmp_eq_u32 s27, 1
    s_movk_i32 s40, 3072
    s_cselect_b32 s40, s40, 3584
    v_lshrrev_b32 v7, 3, v1
    s_lshl_b32 s24, s29, 3
    v_add_u32 v7, s24, v7
    v_mul_lo_u32 v7, v7, s40
    v_bfe_u32 v6, v1, 4, 1
    s_and_b32 s24, s29, 1
    s_lshl_b32 s24, s24, 1
    v_or_b32 v6, s24, v6
    v_bfe_u32 v9, v1, 1, 2
    v_xor_b32 v6, v6, v9
    v_and_b32 v9, 1, v1
    v_lshl_or_b32 v9, v6, 1, v9
    v_lshl_add_u32 v9, v9, 4, v7
    v_cmp_eq_u32 vcc, 3, v6
    v_bfrev_b32 v7, 1
    s_lshl_b32 s32, s21, 17
    s_lshl_b32 s34, s29, 10
    v_cndmask_b32 v10, v9, v7, vcc
    s_mov_b32 s30, 0
    s_mov_b32 s31, 0
    s_lshl_b32 s10, s40, 9
    s_mov_b32 s11, 0x20000
    s_mul_i32 s33, s22, 224
    s_cmp_eq_u32 s27, 1
    s_waitcnt lgkmcnt(0)
    s_mov_b32 s4, s64
    s_mov_b32 s5, s65
    s_cselect_b32 s8, s66, s72
    s_cselect_b32 s9, s67, s73
    s_cbranch_scc1 f_aload
    """)
    a("s_getpc_b64 s[56:57]\nf_mret0:\ns_add_u32 s56, s56, f_mprog - f_mret0\ns_addc_u32 s57, s57, 0")
    a.label("f_mi")
    a(f"""
    s_cmp_lt_u32 s30, 8
    s_cselect_b32 s38, 1792, 0
    s_cselect_b32 s35, {ROT1M}, {ROT1B}
    s_and_b32 s35, s23, s35
    s_add_u32 s35, s30, s35
    s_and_b32 s35, s35, 7
    s_lshl_b32 s36, s35, 7
    s_add_u32 s36, s36, s32
    s_mul_i32 s37, s35, {64*3584}
    s_add_u32 s37, s37, s33
    s_add_u32 s37, s37, s38
    s_add_u32 s38, s30, 2
    s_and_b32 s38, s38, {M_R-1}
    s_lshl_b32 s38, s38, 15
    s_add_u32 s38, s38, s34
    s_add_u32 s30, s30, 1
    """)
    for b in range(4):
        a(f"s_add_u32 m0, s38, {b*4096}\ns_add_u32 s39, s36, {b*32768}\nbuffer_load_dwordx4 v8, s[4:7], s39 offen lds")
    for gq in range(2):
        for hi in range(2):
            a(f"s_add_u32 m0, s38, {M_XB + gq*8192 + hi*4096}\ns_add_u32 s39, s37, {hi*32*3584 + gq*128}\nbuffer_load_dwordx4 v{9+gq}, s[8:11], s39 offen lds")
    a("s_setpc_b64 s[56:57]")
    a.label("f_aload")
    a("s_sub_u32 s33, s32, 32768\ns_max_i32 s33, s33, 0\ns_lshl_b32 s54, s22, 7")
    a("s_getpc_b64 s[56:57]\nf_aret0:\ns_add_u32 s56, s56, f_aprog - f_aret0\ns_addc_u32 s57, s57, 0")
    a.label("f_ai")
    a(f"""
    s_and_b32 s35, s23, {ROT1A}
    s_add_u32 s35, s30, s35
    s_and_b32 s35, s35, 7
    s_lshl_b32 s36, s35, 7
    s_mul_i32 s37, s35, {64*3072}
    s_add_u32 s37, s37, s54
    s_add_u32 s38, s31, s34
    s_add_u32 s31, s31, {A_ST}
    s_cmp_eq_u32 s31, {A_ST*A_R}
    s_cselect_b32 s31, 0, s31
    s_add_u32 s30, s30, 1
    s_mov_b32 m0, s38
    s_add_u32 s39, s36, s33
    buffer_load_dwordx4 v8, s[4:7], s39 offen lds
    s_add_u32 s36, s36, s32
    """)
    for b in range(1, 5):
        a(f"s_add_u32 m0, s38, {b*4096}\ns_add_u32 s39, s36, {(b-1)*32768}\nbuffer_load_dwordx4 v8, s[4:7], s39 offen lds")
    for gq in range(3):
        for hi in range(2):
            a(f"s_add_u32 m0, s38, {A_XB + gq*8192 + hi*4096}\ns_add_u32 s39, s37, {hi*32*3072 + gq*1024}\nbuffer_load_dwordx4 v9, s[8:11], s39 offen lds")
    a("s_setpc_b64 s[56:57]")
    class St: pass
    def wpiece(LP, st):
        t, b = st.wp // 4, st.wp % 4
        lds = WB + ((4 + t) % 6) * 16384 + b * 4096
        a(f"s_add_u32 m0, s34, {lds}")
        if b == 0: a("buffer_load_dwordx4 v11, s[96:99], s71 offen lds")
        else: a(f"s_add_u32 s39, s71, {b*131072}\nbuffer_load_dwordx4 v11, s[96:99], s39 offen lds")
        if b == 3: a("s_add_u32 s71, s71, 128\ns_cmp_eq_u32 s71, s72\ns_cselect_b32 s71, s70, s71")
        LP.q.append(("w", t)); st.wp += 1
    def lin(LP, lds, sreg, tag):
        L = a.newlabel("l3")
        a(f"s_add_u32 m0, s77, {lds}\ns_cmp_ge_u32 s29, 2")
        for n in range(3): a(f"buffer_load_dwordx4 v12, s[12:15], {sreg} offen offset:{n*1024} {LDF} lds")
        a(f"s_cbranch_scc1 {L}\nbuffer_load_dwordx4 v12, s[12:15], {sreg} offen offset:3072 {LDF} lds\n{L}:")
        LP.q += [tag] * 3
    def zload(LP, n):
        lin(LP, (n % 4) * 16384, "s76", ("z", n))
        a("s_add_u32 s76, s76, 14336\ns_cmp_eq_u32 s76, s75\ns_cselect_b32 s76, s74, s76")
    def xload(LP, j):
        lds = XL[j]
        L = a.newlabel("x3")
        a(f"s_add_u32 s37, s43, {j}\ns_and_b32 s37, s37, 7\ns_mul_i32 s37, s37, {112*1024}")
        for q in range(3): a(f"s_add_u32 m0, s34, {lds + q*4096}\ns_add_u32 s39, s37, {q*32768}\nbuffer_load_dwordx4 v13, s[16:19], s39 offen lds")
        a(f"s_cmp_ge_u32 s29, 2\ns_cbranch_scc1 {L}\ns_add_u32 m0, s34, {lds + 3*4096}\ns_add_u32 s39, s37, {3*32768}\nbuffer_load_dwordx4 v13, s[16:19], s39 offen lds\n{L}:")
        LP.q += [("x", j)] * 3
    def woload(LP, c):
        lds = WOL[c >> 1] + (c & 1) * 8192
        a(f"s_add_u32 s37, s43, {c}\ns_and_b32 s37, s37, 7\ns_lshl_b32 s37, s37, 16\ns_add_u32 m0, s34, {lds}\ns_add_u32 s39, s37, 32768")
        a(f"buffer_load_dwordx4 v13, s[8:11], s37 offen lds\ns_add_u32 m0, s34, {lds + 4096}\ns_nop 0\nbuffer_load_dwordx4 v13, s[8:11], s39 offen lds")
        LP.q += [("wo", c)] * 2
    def ctouch(LP):
        if CT: a("global_load_dword v35, v34, s[88:89]"); LP.extra(1)
    def g2prog(LP, st, N, isM):
        ctouch(LP)
        srd(a, 8, 68, 512*1024)
        tag_get(a, 20)
        wg_poll(a, 16, 20, 2, RELW); LP.drained()
        ltick(a)
        for c in range(3): zload(LP, c)
        if isM:
            for _ in range(NPOST): wpiece(LP, st)
        for n in range(N):
            LP.bar(("z", n), ("w", n))
            if n + 3 < N: zload(LP, n + 3)
            left = 4*N - st.wp
            k = -(-left // max(1, N - WEND - n))
            k = min(k, 4*(n + 6) - st.wp if n >= 1 else 24 - st.wp)
            for _ in range(k): wpiece(LP, st)
            assert st.wp >= min(4*N, 4*(n + 2)), (n, st.wp)
            if not isM and n == XT_A:
                a("s_movk_i32 s24, 6144\nbuffer_load_dword v30, v26, s[16:19], 0 offen\nbuffer_load_dword v31, v26, s[16:19], s24 offen"); LP.extra(2)
            if n % 4 == 2: ctouch(LP)
            if n == 4: a("buffer_load_dwordx2 v[28:29], v18, s[12:15], 0 offen sc0 sc1"); LP.extra(1)
            if n == 9:
                L = a.newlabel("of")
                a(f"v_cmp_ne_u64 vcc, s[62:63], v[28:29]\ns_cbranch_vccz {L}")
                flag_poll(a, 18, 28)
                a.label(L)
            if isM and n == GF_LD: a("buffer_load_dwordx2 v[28:29], v19, s[12:15], 0 offen sc0 sc1"); LP.q.append("gf")
            if isM and n == GF_CK:
                idx = [i for i, x in enumerate(LP.q) if x == "gf"]
                if idx: a(f"s_waitcnt vmcnt({len(LP.q) - 1 - idx[0]})")
                L = a.newlabel("gf")
                a(f"v_cmp_ne_u64 vcc, s[62:63], v[28:29]\ns_cbranch_vccz {L}")
                flag_poll(a, 19, 28)
                a.label(L)
                assert n >= 18
                lin(LP, GB0, "s41", "g"); a("s_add_u32 s41, s41, 14336"); lin(LP, GB1, "s41", "g")
            if isM:
                for j in XM_AT.get(n, []):
                    assert n >= {0: 17, 1: 18, 2: 19, 4: 19, 6: 15, 7: 16}[j] and (j < 6 or st.wp == 4*N or True)
                    xload(LP, j)
            else:
                for c in WO_AT.get(n, []):
                    assert n >= 7 + (c >> 1)
                    woload(LP, c)
        LP.bar("g")
    a.label("f_mprog")
    srd(a, 12, 86, WS_SIZE)
    tick0(a)
    LP = LoaderProg(a); st = St(); st.wp = 0
    LP.q += [0] * 8
    nxt = 1
    for s in range(16):
        hi = min(15, s + 1 if s < 8 else (8 if s == 8 else s + 2))
        while nxt <= hi:
            LP.call("f_mi", 8, nxt); nxt += 1
        if s == 8:
            LP.bar()
            while nxt <= 11: LP.call("f_mi", 8, nxt); nxt += 1
            a("s_call_b64 s[56:57], f_lsetup")
            tag_load(a, 20); LP.extra(1); ctouch(LP)
            for _ in range(4*NEARLY): wpiece(LP, st)
        if s == 13: ctouch(LP)
        if s >= 16 - NLATE:
            a("s_setprio 0")
            for _ in range(4): wpiece(LP, st)
        LP.bar(s, notick=(s in (2, 4, 6, 10, 12)))
    LP.bar()
    a("s_setprio 3")
    while st.wp < 4*NPRE_M: wpiece(LP, st)
    g2prog(LP, st, NM, True)
    a("s_branch f_ltail")
    a.label("f_aprog")
    srd(a, 12, 86, WS_SIZE)
    tick0(a)
    LP = LoaderProg(a); st = St(); st.wp = 0
    LP.q += [0] * 11
    nxt = 1
    for s in range(8):
        while nxt <= min(7, s + 1): LP.call("f_ai", 11, nxt); nxt += 1
        if s == 7:
            a("s_call_b64 s[56:57], f_lsetup")
            tag_load(a, 20); LP.extra(1); ctouch(LP)
            if WT_A:
                a("s_movk_i32 s24, 0x4000\nbuffer_load_dword v30, v27, s[96:99], 0 offen\nbuffer_load_dword v31, v27, s[96:99], s24 offen\nbuffer_load_dword v32, v33, s[96:99], 0 offen offset:2048")
                LP.extra(3)
        LP.bar(s)
    LP.bar()
    LP.bar()
    while st.wp < 4*NPRE_A: wpiece(LP, st)

    g2prog(LP, st, NA, False)
    a.label("f_ltail")
    LP = LoaderProg(a)
    def oload(n):
        a(f"s_add_u32 s36, s43, {n}\ns_and_b32 s36, s36, 7\ns_lshl_b32 s36, s36, 12\ns_add_u32 s36, s36, s52\ns_add_u32 m0, s35, {(n % 4) * 16384}\ns_nop 0")
        for q in range(4): a(f"buffer_load_dwordx4 v12, s[12:15], s36 offen offset:{q*1024} {LDF} lds")
        LP.q += [("o", n)] * 4
    def hload(n):
        a(f"s_mul_i32 s37, s55, 14336\ns_add_u32 s37, s37, s53\ns_add_u32 s55, s55, 1\ns_and_b32 s55, s55, 7")
        lin(LP, (n % 4) * 16384, "s37", ("h", n))
    a("s_lshl_b32 s35, s34, 2\ns_setprio 0")
    LP.bar()
    a("s_cmp_eq_u32 s27, 0\ns_cbranch_scc1 f_lx")
    for c in range(3): oload(c)
    for n in range(8):
        LP.bar(("o", n))
        if n + 3 < 8: oload(n + 3)
    LP.bar()
    for j in range(8): xload(LP, j)
    LP.bar(*[("x", j) for j in range(NWS)])
    a("s_branch f_lx2")
    a.label("f_lx")
    LP.q = []
    early = sum(XM_AT.values(), [])
    for j in range(8):
        if j not in early: xload(LP, j)
    if not any(x[1] < NWS for x in LP.q): a(f"s_waitcnt vmcnt({len(LP.q)})")
    LP.bar(*[("x", j) for j in range(NWS)])
    a.label("f_lx2")
    LP.bar()
    a("s_setprio 3")
    wg_poll(a, 17, 20, 4, RELW); LP.drained()
    ltick(a)
    for c in range(4): hload(c)
    for n in range(8):
        LP.bar(("h", n))
        if n >= 1 and n + 3 < 8: hload(n + 3)
    ltick(a)
    tick_end(a)
    a("s_endpgm")
    a.label("f_lsetup")
    srd(a, 96, 74, 2048*4096)
    srd(a, 16, 78, 896*1024)
    rowtile_voff(a, 11, 29, 12, 6, 7)
    a(f"""
    v_lshlrev_b32 v12, 4, v1
    s_cmp_eq_u32 s27, 0
    s_cselect_b32 s24, 0, {NM}
    s_cselect_b32 s25, {NM}, {NA}
    s_and_b32 s26, s23, 7
    s_mul_i32 s26, s26, s25
    s_lshr_b32 s26, s26, 3
    s_lshl_b32 s70, s21, 19
    s_lshl_b32 s50, s24, 7
    s_add_u32 s70, s70, s50
    s_lshl_b32 s50, s25, 7
    s_add_u32 s72, s70, s50
    s_lshl_b32 s50, s26, 7
    s_add_u32 s71, s70, s50
    s_lshl_b32 s77, s29, 12
    s_cmp_eq_u32 s29, 3
    s_cselect_b32 s77, {11*1024}, s77
    s_lshl_b32 s74, s22, 5
    s_add_u32 s74, s74, s24
    s_mul_i32 s74, s74, 14336
    s_add_u32 s74, s74, s77
    s_add_u32 s74, s74, {Z2N}
    s_mul_i32 s50, s25, 14336
    s_add_u32 s75, s74, s50
    s_mul_i32 s50, s26, 14336
    s_add_u32 s76, s74, s50
    s_lshl_b32 s25, s25, 1
    s_sub_u32 s25, s25, 1
    v_min_u32 v16, s25, v1
    s_lshl_b32 s50, s22, 6
    s_lshl_b32 s24, s24, 1
    s_add_u32 s50, s50, s24
    s_lshl_b32 s50, s50, 3
    s_add_u32 s50, s50, {FLG}
    v_lshlrev_b32 v16, 3, v16
    v_add_u32 v16, s50, v16
    s_lshr_b32 s24, s29, 1
    s_lshl_b32 s24, s24, {0 if MAP else 2}
    s_sub_u32 s52, s44, s24
    s_lshl_b32 s52, s52, 1
    s_and_b32 s24, s29, 1
    s_add_u32 s52, s52, s24
    s_lshl_b32 s52, s52, 15
    s_add_u32 s52, s52, {OB}
    s_mul_i32 s53, s44, {8*14336}
    s_add_u32 s53, s53, s77
    s_add_u32 s53, s53, {HB}
    s_and_b32 s24, s44, 3
    s_lshl_b32 s24, s24, 1
    s_add_u32 s43, s45, s24
    s_and_b32 s43, s43, 7
    s_mov_b32 s42, s43
    s_mov_b32 s55, s43
    v_lshrrev_b32 v7, 3, v1
    s_lshl_b32 s24, s29, 3
    v_add_u32 v13, s24, v7
    v_lshlrev_b32 v13, 10, v13
    v_bfe_u32 v5, v1, 1, 2
    v_xor_b32 v6, v3, v5
    v_and_b32 v4, 1, v1
    v_lshl_or_b32 v6, v6, 1, v4
    v_lshl_add_u32 v13, v6, 4, v13
    s_lshl_b32 s25, s45, 7
    v_add_u32 v13, s25, v13
    v_lshlrev_b32 v6, 3, v2
    s_lshl_b32 s24, s44, 7
    s_add_u32 s24, s24, {FLG + 0x3000}
    v_add_u32 v17, s24, v6
    v_and_b32 v6, 31, v1
    v_lshlrev_b32 v6, 3, v6
    s_lshr_b32 s24, s44, 1
    s_lshl_b32 s24, s24, 8
    s_add_u32 s24, s24, {FLG + 0x2000}
    v_add_u32 v18, s24, v6
    s_lshl_b32 s24, s27, 9
    s_mul_i32 s24, s24, {0 if MAP else 1}
    v_subrev_u32 v7, s24, v18
    v_cmp_gt_u32 vcc, 32, v1
    s_nop 1
    v_cndmask_b32 v18, v7, v18, vcc
    s_lshl_b32 s24, s3, 5
    s_add_u32 s24, s24, {FLG + 0x4000}
    v_and_b32 v7, 24, v6
    v_add_u32 v7, s24, v7
    v_cndmask_b32 v17, v7, v17, vcc
    s_lshl_b32 s41, s21, 3
    s_add_u32 s41, s41, s22
    s_lshl_b32 s24, s41, 5
    s_add_u32 s24, s24, {FLG + 0x1000}
    v_and_b32 v6, 24, v6
    v_add_u32 v19, s24, v6
    s_lshr_b32 s24, s2, 4
    s_lshl_b32 s24, s24, 2
    s_add_u32 s24, s24, s29
    s_mul_i32 s25, s24, 14336
    v_lshlrev_b32 v26, 7, v1
    v_add_u32 v26, s25, v26
    s_lshl_b32 s24, s24, 15
    s_lshr_b32 s25, s21, 2
    s_lshl_b32 s25, s25, 21
    s_add_u32 s24, s24, s25
    v_lshlrev_b32 v27, 12, v3
    v_lshl_add_u32 v27, v2, 7, v27
    v_add_u32 v27, s24, v27
    v_bfe_u32 v33, v1, 2, 3
    v_lshlrev_b32 v33, 12, v33
    v_and_b32 v7, 3, v1
    v_lshl_add_u32 v33, v7, 7, v33
    v_add_u32 v33, s24, v33
    s_getpc_b64 s[88:89]
f_lsp:
    s_sub_u32 s88, s88, f_lsp - {KNAME}
    s_subb_u32 s89, s89, 0
    s_lshr_b32 s24, s2, 3
    s_lshl_b32 s24, s24, 2
    s_add_u32 s24, s24, s29
    s_mul_i32 s24, s24, 384
    v_min_u32 v34, 2, v1
    v_lshlrev_b32 v34, 7, v34
    v_add_u32 v34, s24, v34
    v_min_u32 v34, {hx(CODE_BYTES)}, v34
    s_mul_i32 s41, s41, 28672
    s_add_u32 s41, s41, s77
    s_add_u32 s41, s41, {Z1}
    s_setpc_b64 s[56:57]
    """)
    a.label("f_comp")
    code_prefetch(a, 3, 250)
    a("s_waitcnt lgkmcnt(0)\ns_mov_b32 s4, s64\ns_mov_b32 s5, s65")
    srd(a, 12, 86, WS_SIZE)
    tick0(a)
    XA0, XA1, WA = 5, 6, 8
    CX0, CX1, CW = 12, 13, 14
    AC2 = 20; AC1 = 76; FX = 132; FY = 168; SUM = 204; SQ = 212
    a("s_cmp_eq_u32 s27, 1\ns_cbranch_scc1 f_attn")
    NC = 244; ZP = 204; BI = 236; EY = 232
    a(f"""
    s_or_b32 s36, s2, s20
    s_cmp_lg_u32 s36, 0
    s_cbranch_scc1 f_notag
    s_memrealtime s[36:37]
    v_mov_b32 v{NC+2}, 0
    s_waitcnt lgkmcnt(0)
    s_or_b32 s36, s36, 1
    v_mov_b32 v{NC}, s36
    v_mov_b32 v{NC+1}, s37
    s_mov_b64 exec, 1
    global_store_dwordx2 v{NC+2}, {vr(NC,2)}, s[84:85] sc0 sc1
    s_mov_b64 exec, -1
f_notag:
    s_lshl_b32 s24, s21, 2
    s_add_u32 s24, s24, s29
    s_lshl_b32 s24, s24, 6
    v_lshlrev_b32 v7, 2, v2
    v_add_u32 v7, s24, v7
    global_load_dword v251, v7, s[76:77]
    """)
    rowtile_raddr(a, XA0, XA1, 7)
    a(f"s_lshl_b32 s24, s29, 12\nv_add_u32 v{XA0}, s24, v{XA0}\nv_add_u32 v{XA1}, s24, v{XA1}")
    tr_addr(a, WA, 3, M_XB, 4)
    for r in range(0, 112, 2): a(f"v_pk_mov_b32 {vr(AC2+r,2)}, 0, 0")
    def m_reads(F, kk):
        cx = CX0 if kk == 0 else CX1
        out = [f"ds_read_b128 {vr(F+4*p,4)}, v{cx} offset:{p*2048}" for p in range(2)]
        for n in range(7):
            for h in range(2):
                out.append(f"ds_read_b64_tr_b16 {vr(F+8+4*n+2*h,2)}, v{CW+(n&3)} offset:{(n>>2)*8192 + kk*4096 + h*512}")
        return out
    def m_mfma(F, ACC, swap):
        out = []
        for n in range(7):
            for p in range(2):
                d = vr(ACC + (p*7+n)*4, 4); x = vr(F+4*p, 4); w = vr(F+8+4*n, 4)
                out.append(f"v_mfma_f32_16x16x32_bf16 {d}, {w if swap else x}, {x if swap else w}, {d}")
        return out
    def m_setaddr():
        return [f"v_add_u32 v{CX0}, s31, v{XA0}", f"v_add_u32 v{CX1}, s31, v{XA1}"] + [f"v_add_u32 v{CW+q}, s31, v{WA+q}" for q in range(4)]
    a(f"s_mov_b32 s31, {2*M_ST}")
    cons_loop(a, "f_z2loop", 8, M_ST, M_R, FX, FY, m_reads, lambda F: m_mfma(F, AC2, False), m_setaddr, True, True, bpos=7, lat=5)
    tick(a)
    tag_load(a, NC)
    a(f"s_mov_b32 s32, {hx(f2u(GC2))}\ns_mov_b32 s33, {hx(f2u(GC2))}\nv_mov_b32 v18, {hx(f2u(GC1))}\nv_mov_b32 v19, {hx(f2u(GC1))}")
    T = FY
    for n in range(7):
        prs = [AC2 + (p*7+n)*4 + 2*q for p in range(2) for q in range(2)]
        gelu_block(a, prs, [T + 2*k for k in range(4)], 32, 18)
        for k, x in enumerate(prs):
            if n == 0: a(f"v_pk_mul_f32 {vr(SQ+2*k,2)}, {vr(x,2)}, {vr(x,2)}")
            else:
                a(f"v_pk_fma_f32 {vr(SQ+2*k,2)}, {vr(x,2)}, {vr(x,2)}, {vr(SQ+2*k,2)}")
                a(f"v_pk_add_f32 {vr(SUM+2*k,2)}, {vr(x,2)}, {vr(x-4 if n == 1 else SUM+2*k,2)}")
    seq = [(base+p*4+r, base+p*4+r+2) for base in (SUM, SQ) for p in range(2) for r in range(2)]
    for lo, hi in seq: a(f"v_add_f32_dpp v{lo}, v{lo}, v{lo} row_ror:8 {DP} bank_mask:0x3")
    for lo, hi in seq: a(f"v_add_f32_dpp v{lo}, v{hi}, v{hi} row_ror:8 {DP} bank_mask:0xc")
    seq = [(base+p*4, base+p*4+1) for base in (SUM, SQ) for p in range(2)]
    for lo, hi in seq: a(f"v_add_f32_dpp v{lo}, v{lo}, v{lo} row_shl:4 {DP} bank_mask:0x5")
    for lo, hi in seq: a(f"v_add_f32_dpp v{lo}, v{hi}, v{hi} row_shr:4 {DP} bank_mask:0xa")
    for qp in ("[1,0,3,2]", "[2,3,0,1]"):
        for lo, hi in seq: a(f"v_add_f32_dpp v{lo}, v{lo}, v{lo} quad_perm:{qp} {DP} bank_mask:0xf")
    tag_get(a, NC)
    a(f"""
    v_and_b32 v7, 1, v2
    v_cmp_eq_u32 vcc, 1, v7
    v_lshrrev_b32 v4, 2, v2
    v_lshl_add_u32 v4, v4, 1, v7
    v_lshl_add_u32 v4, v3, 3, v4
    v_lshlrev_b32 v4, 4, v4
    v_cndmask_b32 v{T}, v{SUM}, v{SUM+4}, vcc
    v_cndmask_b32 v{T+1}, v{SQ}, v{SQ+4}, vcc
    v_mov_b32 v{T+2}, s62
    v_mov_b32 v{T+3}, s63
    s_lshl_b32 s34, s21, 2
    s_add_u32 s34, s34, s29
    s_lshl_b32 s34, s34, 12
    s_add_u32 s34, s34, {MBOX}
    s_lshl_b32 s35, s22, 9
    s_add_u32 s35, s35, s34
    s_mov_b32 s36, 0x33333333
    s_mov_b32 s37, 0x33333333
    s_mov_b64 exec, s[36:37]
    buffer_store_dwordx4 {vr(T,4)}, v4, s[12:15], s35 offen sc0 sc1
    s_mov_b64 exec, -1
    s_nop 1
    """)
    tick(a)
    P = 226; PA = 242; L16 = 243
    a("s_lshl_b32 s48, s22, 6\ns_lshl_b32 s49, s21, 2\ns_add_u32 s48, s48, s49\ns_add_u32 s48, s48, s29\ns_lshl_b32 s48, s48, 3")
    a(f"""
    v_and_b32 v{PA}, 7, v2
    v_lshl_add_u32 v{PA}, v3, 3, v{PA}
    v_lshlrev_b32 v{PA}, 4, v{PA}
    v_lshrrev_b32 v7, 3, v2
    v_lshl_add_u32 v{PA}, v7, 9, v{PA}
    v_lshlrev_b32 v{L16}, 4, v1
    s_mov_b32 s49, {HK_A}
    s_barrier
    """)
    madv = [f"s_add_u32 s31, s31, {M_ST}", f"s_and_b32 s31, s31, {M_ST*M_R-1}", "s_cmp_eq_u32 s30, s49", "s_cbranch_scc1 f_mhook", "f_mhookr:"]
    cons_loop(a, "f_z1loop", 8, M_ST, M_R, FX, FY, m_reads, lambda F: m_mfma(F, AC1, True), m_setaddr, False, False, bpos=7, lat=5, adv=madv)
    tick(a)
    a("s_barrier")
    for m in range(7): gelu_block(a, [AC1+8*m+2*q for q in range(4)], [FY + 2*k for k in range(4)], 32, 18)
    a(f"v_lshlrev_b32 v{BI+2}, 16, v251\nv_and_b32 v{BI+4}, 0xffff0000, v251\ns_mov_b32 s51, {NM}")
    a(f"""
    v_lshlrev_b32 v7, 2, v3
    v_sub_u32 v7, v2, v7
    v_mov_b32 v9, 0x3f80
    v_mov_b32 v10, 0x3f800000
    v_cmp_eq_u32 vcc, 0, v7
    v_cmp_eq_u32 s[36:37], 1, v7
    v_cndmask_b32 v{EY}, 0, v9, vcc
    v_cndmask_b32 v{EY}, v{EY}, v10, s[36:37]
    v_cmp_eq_u32 vcc, 2, v7
    v_cmp_eq_u32 s[36:37], 3, v7
    v_cndmask_b32 v{EY+1}, 0, v9, vcc
    v_cndmask_b32 v{EY+1}, v{EY+1}, v10, s[36:37]
    s_branch f_join
    """)
    def poll_loads():
        for j in range(4): a(f"buffer_load_dwordx4 {vr(P+4*j,4)}, v{PA}, s[12:15], s34 offen offset:{j*1024} sc0 sc1")
    a.label("f_mhook")
    a(f"s_cmp_eq_u32 s49, {HK_A}\ns_cbranch_scc0 f_mhook2\ns_mov_b32 s49, {HK_B}")
    poll_loads()
    a("s_branch f_mhookr")
    a.label("f_mhook2")
    a(f"s_cmp_eq_u32 s49, {HK_B}\ns_cbranch_scc1 f_mhook3\ns_add_u32 s49, s48, {FLG}")
    flag_set(a, "s49", NC)
    tick(a)
    a("s_branch f_mhookr")
    a.label("f_mhook3")
    a(f"s_mov_b32 s49, {HK_C}")
    tick(a)
    a("s_mov_b32 s47, 0\ns_branch f_pollc")
    a.label("f_poll")
    poll_loads()
    a.label("f_pollc")
    a("s_waitcnt vmcnt(0)")
    a(f"v_xor_b32 v7, s62, v{P+2}\nv_xor_b32 v4, s63, v{P+3}\nv_or_b32 v7, v7, v4")
    for j in range(1, 4):
        a(f"v_xor_b32 v4, s62, v{P+4*j+2}\nv_xor_b32 v{P+4*j+2}, s63, v{P+4*j+3}\nv_or3_b32 v7, v7, v4, v{P+4*j+2}")
    a(f"v_cmp_ne_u32 vcc, 0, v7\ns_add_u32 s47, s47, 1\ns_cmp_gt_u32 s47, {SPIN}\ns_cbranch_scc1 f_pollx\ns_cbranch_vccnz f_poll")
    a.label("f_pollx")
    tick(a)
    a(f"""
    v_pk_add_f32 {vr(P,2)}, {vr(P,2)}, {vr(P+4,2)}
    v_pk_add_f32 {vr(P+8,2)}, {vr(P+8,2)}, {vr(P+12,2)}
    v_pk_add_f32 {vr(P,2)}, {vr(P,2)}, {vr(P+8,2)}
    s_lshl_b32 s34, s21, 2
    s_add_u32 s34, s34, s29
    v_add_f32_dpp v{P}, v{P}, v{P} row_ror:8 {DP} bank_mask:0xf
    v_add_f32_dpp v{P+1}, v{P+1}, v{P+1} row_ror:8 {DP} bank_mask:0xf
    s_lshl_b32 s35, s22, 6
    v_mul_f32 v{P}, {hx(f2u(1.0/896))}, v{P}
    v_mul_f32 v{P+1}, {hx(f2u(1.0/896))}, v{P+1}
    v_fma_f32 v{P+1}, -v{P}, v{P}, v{P+1}
    v_max_f32 v{P+1}, 0, v{P+1}
    v_add_f32 v{P+1}, {hx(f2u(1e-5))}, v{P+1}
    v_rsq_f32 v{P+1}, v{P+1}
    s_add_u32 s34, s34, s35
    v_mul_f32 v{P}, v{P}, v{P+1}
    v_sub_f32 v{P}, 0, v{P}
    s_mul_i32 s34, s34, 7168
    s_add_u32 s34, s34, {Z2N}
    s_add_u32 s35, s34, 4096
    """)
    for p in range(2):
        for r in range(4):
            a(f"v_mov_b32_dpp v{SQ+p*4+r}, v{P+1} row_newbcast:{2*r+p} {DP} bank_mask:0xf")
            a(f"v_mov_b32_dpp v{SUM+p*4+r}, v{P} row_newbcast:{2*r+p} {DP} bank_mask:0xf")
    for n in range(7):
        for p in range(2):
            for q in range(2):
                x = AC2 + (p*7+n)*4 + 2*q
                a(f"v_pk_fma_f32 {vr(x,2)}, {vr(x,2)}, {vr(SQ+p*4+2*q,2)}, {vr(SUM+p*4+2*q,2)}")
        for r in range(4): a(f"v_cvt_pk_bf16_f32 v{AC2+n*4+r}, v{AC2+n*4+r}, v{AC2+(7+n)*4+r}")
        a(f"buffer_store_dwordx4 {vr(AC2+n*4,4)}, v{L16}, s[12:15], s{34 + (n>>2)} offen offset:{(n&3)*1024} {STF}")
    tick(a)
    a("s_branch f_mhookr")

    a.label("f_attn")
    QA = 20; KA = 52; VA = 92
    AFX = 132; AFY = 184
    MC, MP, AC, AP = 236, 240, 244, 246
    a(f"""
    s_lshl_b32 s24, s21, 7
    s_lshl_b32 s25, s22, 4
    s_add_u32 s24, s24, s25
    s_lshl_b32 s25, s29, 2
    s_add_u32 s24, s24, s25
    s_lshl_b32 s25, s24, 10
    v_lshlrev_b32 v4, 4, v1
    """)
    for q in range(4): a(f"buffer_load_dwordx4 {vr(AFX+4*q,4)}, v4, s[4:7], s25 offen offset:{q*1024}")
    a(f"global_load_dwordx4 {vr(AFX+16,4)}, v4, s[80:81]")
    rowtile_raddr(a, XA0, XA1, 7)
    tr_addr(a, WA, 3, A_XB, 1, "s29")
    for r in range(0, 112, 2): a(f"v_pk_mov_b32 {vr(QA+r,2)}, 0, 0")
    a(f"v_lshlrev_b32 v7, 2, v3\nv_sub_u32 v7, v2, v7\nv_mov_b32 v18, {hx(f2u(-1e30))}")
    for r in range(4):
        a(f"""
        v_subrev_u32 v19, {r}, v7
        v_cmp_gt_u32 vcc, 8, v19
        v_cmp_gt_i32 s[38:39], -8, v19
        v_cndmask_b32 v{MC+r}, v18, 0, vcc
        v_cndmask_b32 v{MP+r}, v18, 0, s[38:39]
        v_cndmask_b32 v19, 0, -1, vcc
        """)
        if r % 2 == 0: a(f"v_and_b32 v{AC+r//2}, 0xffff, v19")
        else: a(f"v_and_b32 v19, 0xffff0000, v19\nv_or_b32 v{AC+r//2}, v{AC+r//2}, v19")
    a(f"v_not_b32 v{AP}, v{AC}\nv_not_b32 v{AP+1}, v{AC+1}")
    G = AFX + 20
    for q in range(4): a(f"v_mov_b32 v{G+q}, 0")
    a("s_waitcnt vmcnt(0)")
    for e in range(4):
        for q in range(4): a(f"v_dot2c_f32_bf16 v{G+q}, v{AFX+4*q+e}, v{AFX+16+e}")
    for sh in (8, 4, 2, 1):
        for q in range(4): a(f"v_add_f32_dpp v{G+q}, v{G+q}, v{G+q} row_ror:{sh} {DP} bank_mask:0xf")
    a(f"""
    v_permlane16_swap_b32 v{G}, v{G+1}
    v_permlane16_swap_b32 v{G+2}, v{G+3}
    v_add_f32 v{G}, v{G}, v{G+1}
    v_add_f32 v{G+2}, v{G+2}, v{G+3}
    s_and_b32 s25, s24, 31
    s_lshr_b32 s25, s25, 1
    v_permlane32_swap_b32 v{G}, v{G+2}
    v_add_f32 v{G}, v{G}, v{G+2}
    s_andn2_b32 s24, s24, 31
    s_add_u32 s24, s24, s25
    s_lshl_b32 s24, s24, 2
    s_add_u32 s24, s24, {GATE}
    v_mul_f32 v{G}, {hx(f2u(-LOG2E))}, v{G}
    v_exp_f32 v{G}, v{G}
    v_and_b32 v4, 1, v3
    v_lshlrev_b32 v4, 6, v4
    v_lshrrev_b32 v7, 1, v3
    v_lshl_add_u32 v4, v7, 2, v4
    v_add_f32 v{G}, 1.0, v{G}
    v_rcp_f32 v{G}, v{G}
    s_mov_b32 s36, 0x00010001
    s_mov_b32 s37, 0x00010001
    s_mov_b64 exec, s[36:37]
    buffer_store_dword v{G}, v4, s[12:15], s24 offen {STF}
    s_mov_b64 exec, -1
    """)
    def a_reads(F, kk):
        cx = CX0 if kk == 0 else CX1
        out = []
        for gq in (1, 2, 0):
            for h in range(2):
                out.append(f"ds_read_b64_tr_b16 {vr(F+40+4*gq+2*h,2)}, v{CW} offset:{gq*8192 + kk*4096 + h*512}")
        for b in range(5):
            for p in range(2): out.append(f"ds_read_b128 {vr(F+(p*5+b)*4,4)}, v{cx} offset:{b*4096 + p*2048}")
        return out
    def a_mfma(F):
        out = []
        for b in range(5):
            for p in range(2):
                x = vr(F+(p*5+b)*4, 4); kd = vr(KA+(p*5+b)*4, 4); vd = vr(VA+(p*5+b)*4, 4)
                out.append(f"v_mfma_f32_16x16x32_bf16 {kd}, {vr(F+44,4)}, {x}, {kd}")
                out.append(f"v_mfma_f32_16x16x32_bf16 {vd}, {x}, {vr(F+48,4)}, {vd}")
                if b:
                    qd = vr(QA+(p*4+b-1)*4, 4)
                    out.append(f"v_mfma_f32_16x16x32_bf16 {qd}, {vr(F+40,4)}, {x}, {qd}")
        return out
    def a_setaddr():
        return [f"v_add_u32 v{CX0}, s31, v{XA0}", f"v_add_u32 v{CX1}, s31, v{XA1}", f"v_add_u32 v{CW}, s31, v{WA}"]
    a("s_mov_b32 s31, 0")
    cons_loop(a, "f_aloop", 8, A_ST, A_R, AFX, AFY, a_reads, a_mfma, a_setaddr, True, True, bpos=1)
    tick(a)
    tag_load(a, 220)
    QP, KP, VP = 132, 148, 168
    MP0 = 188; ONE = 192; MX = 196; MT = 204
    a("s_cmp_eq_u32 s21, 0\ns_cselect_b64 s[36:37], 0, -1")
    for r in range(4): a(f"v_cndmask_b32 v{MP0+r}, v18, v{MP+r}, s[36:37]\nv_mov_b32 v{ONE+r}, 0x3f803f80")
    for t in range(10):
        for src, dst in ((KA+4*t, KP+2*t), (VA+4*t, VP+2*t)) + (((QA+4*t, QP+2*t),) if t < 8 else ()):
            a(f"v_cvt_pk_bf16_f32 v{dst}, v{src}, v{src+1}\nv_cvt_pk_bf16_f32 v{dst+1}, v{src+2}, v{src+3}")
    SC, SP, PB = 20, 52, 84
    U = [(p, j) for p in range(2) for j in range(4)]
    for u, (p, j) in enumerate(U):
        q = vr(QP+2*u, 2)
        a(f"v_mfma_f32_16x16x16_bf16 {vr(SC+4*u,4)}, {vr(KP+2*(p*5+j+1),2)}, {q}, {vr(MC,4)}")
        a(f"v_mfma_f32_16x16x16_bf16 {vr(SP+4*u,4)}, {vr(KP+2*(p*5+j),2)}, {q}, {vr(MP0 if j == 0 else MP,4)}")
    a(f"s_mov_b32 s32, {hx(f2u(0.25 * LOG2E))}")
    for u in range(8):
        for r in range(4): a(f"v_max_f32 v{SC+4*u+r}, v{SC+4*u+r}, v{SP+4*u+r}")
    for u in range(8): a(f"v_max3_f32 v{MX+u}, v{SC+4*u}, v{SC+4*u+1}, v{SC+4*u+2}")
    for u in range(8): a(f"v_max_f32 v{MX+u}, v{MX+u}, v{SC+4*u+3}")
    for sw in ("v_permlane16_swap_b32", "v_permlane32_swap_b32"):
        for u in range(8): a(f"v_mov_b32 v{MT+u}, v{MX+u}")
        for u in range(8): a(f"{sw} v{MX+u}, v{MT+u}")
        for u in range(8): a(f"v_max_f32 v{MX+u}, v{MX+u}, v{MT+u}")
    for u in range(8): a(f"v_mul_f32 v{MX+u}, s32, v{MX+u}")
    for u in range(8):
        for r in range(4): a(f"v_fma_f32 v{SC+4*u+r}, v{SC+4*u+r}, s32, -v{MX+u}")
    for u in range(8):
        for r in range(4): a(f"v_exp_f32 v{SC+4*u+r}, v{SC+4*u+r}")
    for u in range(8):
        a(f"v_cvt_pk_bf16_f32 v{SP+2*u}, v{SC+4*u}, v{SC+4*u+1}\nv_cvt_pk_bf16_f32 v{SP+2*u+1}, v{SC+4*u+2}, v{SC+4*u+3}")
    for u in range(8):
        for q in range(2):
            a(f"v_and_b32 v{PB+4*u+q}, v{AP+q}, v{SP+2*u+q}\nv_and_b32 v{PB+4*u+2+q}, v{AC+q}, v{SP+2*u+q}")
    OA, LA = 20, 52
    for u, (p, j) in enumerate(U):
        a(f"v_mfma_f32_16x16x32_bf16 {vr(LA+4*u,4)}, {vr(ONE,4)}, {vr(PB+4*u,4)}, 0")
        a(f"v_mfma_f32_16x16x32_bf16 {vr(OA+4*u,4)}, {vr(VP+2*(p*5+j),4)}, {vr(PB+4*u,4)}, 0")
    a(f"""
    s_lshl_b32 s34, s21, 7
    s_lshl_b32 s35, s22, 2
    s_add_u32 s34, s34, s35
    s_add_u32 s34, s34, s29
    s_lshl_b32 s34, s34, 10
    s_add_u32 s34, s34, {OB}
    v_lshlrev_b32 v4, 4, v1
    """)
    tag_get(a, 220)
    for u in range(8): a(f"v_rcp_f32 v{LA+4*u}, v{LA+4*u}")
    for j in range(4):
        for p in range(2):
            u = p*4 + j
            for q in range(2): a(f"v_pk_mul_f32 {vr(OA+4*u+2*q,2)}, {vr(OA+4*u+2*q,2)}, {vr(LA+4*u,2)} op_sel_hi:[1,0]")
        for p in range(2):
            u = p*4 + j
            a(f"v_cvt_pk_bf16_f32 v{PB+4*j+2*p}, v{OA+4*u}, v{OA+4*u+1}\nv_cvt_pk_bf16_f32 v{PB+4*j+2*p+1}, v{OA+4*u+2}, v{OA+4*u+3}")
        a(f"s_add_u32 s35, s34, {j*32*1024}\nbuffer_store_dwordx4 {vr(PB+4*j,4)}, v4, s[12:15], s35 offen {STF}")
    a(f"""
    s_lshl_b32 s34, s21, 5
    s_lshl_b32 s35, s22, 2
    s_add_u32 s34, s34, s35
    s_add_u32 s34, s34, s29
    s_lshl_b32 s34, s34, 3
    s_add_u32 s50, s34, {FLG + 0x2000}
    """)
    a("s_barrier")
    tick(a)
    a(f"s_lshl_b32 s24, s29, 12\nv_add_u32 v{XA0}, s24, v{XA0}\nv_add_u32 v{XA1}, s24, v{XA1}\nv_mov_b32 v{BI+2}, 0\nv_mov_b32 v{BI+4}, 0\ns_mov_b32 s51, {NA}")
    flag_set(a, "s50", NC)

    a.label("f_join")
    ZA, CZ = 8, 14
    a(f"v_lshlrev_b32 v4, 4, v1")
    for p in range(2):
        for r in range(0, 28, 2): a(f"v_pk_mov_b32 {vr(AC2+p*28+r,2)}, {vr(BI+2+2*p,2)}, {vr(BI+2+2*p,2)}")
    def g_reads(F, kk):
        cx = CX0 if kk == 0 else CX1
        out = [f"ds_read_b128 {vr(F+4*p,4)}, v{cx} offset:{p*2048}" for p in range(2)]
        for n in range(7): out.append(f"ds_read_b128 {vr(F+8+4*n,4)}, v{CZ} offset:{kk*7168 + n*1024}")
        return out
    def g_setaddr(): return [f"v_add_u32 v{CX0}, s31, v{XA0}", f"v_add_u32 v{CX1}, s31, v{XA1}", f"v_add_u32 v{CZ}, s46, v4"]
    gadv = ["s_add_u32 s31, s31, 16384", f"s_cmp_eq_u32 s31, {WE}", f"s_cselect_b32 s31, {WB}, s31", "s_add_u32 s46, s46, 16384", "s_and_b32 s46, s46, 0xffff"]
    tick(a)
    a(f"s_mov_b32 s31, {WB + 4*16384}\ns_mov_b32 s46, 0")
    a(f"""
    s_lshl_b32 s34, s21, 1
    s_lshr_b32 s35, s29, 1
    s_add_u32 s34, s34, s35
    s_lshl_b32 s34, s34, 3
    s_add_u32 s34, s34, s22
    s_lshl_b32 s34, s34, 1
    s_and_b32 s35, s29, 1
    s_add_u32 s34, s34, s35
    s_lshl_b32 s35, s21, 5
    s_lshl_b32 s36, s22, 2
    s_add_u32 s35, s35, s36
    s_add_u32 s35, s35, s29
    s_mov_b32 s37, {FLG + 0x1000}
    s_mov_b32 s38, {Z1}
    s_cmp_eq_u32 s27, 0
    s_cselect_b32 s34, s34, s35
    s_cselect_b32 s37, {FLG + 0x3000}, s37
    s_cselect_b32 s38, {HB}, s38
    s_lshl_b32 s36, s34, 3
    s_add_u32 s36, s36, s37
    s_mul_i32 s34, s34, 7168
    s_add_u32 s34, s34, s38
    s_add_u32 s35, s34, 4096
    s_mov_b32 s24, {GB0}
    s_cmp_ge_u32 s29, 2
    s_cselect_b32 s24, {GB1}, s24
    s_and_b32 s25, s29, 1
    s_mul_i32 s25, s25, 7168
    s_add_u32 s24, s24, s25
    v_add_u32 v7, s24, v4
    """)
    cons_loop(a, "f_g2loop", "s51", 0, 0, FX, FY, g_reads, lambda F: m_mfma(F, AC2, True), g_setaddr, True, False, bpos=2, lat=5, adv=gadv)
    tick(a)
    a("s_barrier\ns_cmp_eq_u32 s27, 0\ns_cbranch_scc1 f_hepi")
    for m in range(7):
        for q in range(4): a(f"v_cvt_pk_bf16_f32 v{FX+4*m+q}, v{AC2+8*m+2*q}, v{AC2+8*m+2*q+1}")
        a(f"buffer_store_dwordx4 {vr(FX+4*m,4)}, v4, s[12:15], s{34+(m>>2)} offen offset:{(m&3)*1024} {STF}")
    a("s_branch f_e2")
    a.label("f_hepi")
    tick(a)
    for m in range(7): a(f"ds_read_b128 {vr(ZP+4*m,4)}, v7 offset:{m*1024}")
    for t in range(14):
        if t % 2 == 0: a(f"s_waitcnt lgkmcnt({6 - t//2})")
        a(f"v_mfma_f32_16x16x16_bf16 {vr(AC2+4*t,4)}, {vr(EY,2)}, {vr(ZP+2*t,2)}, {vr(AC2+4*t,4)}")
    blocks = [(p*28 + m*8, p*3 + m) for p in range(2) for m in range(3)]
    for b, k in blocks:
        for q in range(4): a(f"v_pk_mul_f32 {vr(AC2+b+2*q,2)}, {vr(AC2+b+2*q,2)}, {vr(AC1+b+2*q,2)}")
        for q in range(4): a(f"v_cvt_pk_bf16_f32 v{FX+4*k+q}, v{AC2+b+2*q}, v{AC2+b+2*q+1}")
        a(f"buffer_store_dwordx4 {vr(FX+4*k,4)}, v4, s[12:15], s{34+(k>>2)} offen offset:{(k&3)*1024} {STF}")
    for p in range(2):
        for q in range(2):
            b = p*28 + 24 + 2*q
            a(f"v_pk_mul_f32 {vr(AC2+b,2)}, {vr(AC2+b,2)}, {vr(AC1+b,2)}")
    for p in range(2):
        for q in range(2):
            b = p*28 + 24 + 2*q
            a(f"v_cvt_pk_bf16_f32 v{FX+24+2*p+q}, v{AC2+b}, v{AC2+b+1}")
    a(f"buffer_store_dwordx4 {vr(FX+24,4)}, v4, s[12:15], s35 offen offset:2048 {STF}")
    a.label("f_e2")
    a("s_waitcnt lgkmcnt(0)\ns_barrier")
    tick(a)
    AO = 20; AH = 36; AH6 = 52; GV = 68; OX = 72
    WA3, CH, CW3 = 8, 12, 14
    srd(a, 4, 82, 2048*1024)
    a(f"""
    s_and_b32 s28, s29, 1
    s_lshr_b32 s29, s29, 1
    s_lshl_b32 s33, s44, 2
    s_lshl_b32 s24, s28, 1
    s_add_u32 s33, s33, s24
    s_lshl_b32 s24, s28, 12
    v_add_u32 v{CH}, s24, v4
    v_add_u32 v{CH+1}, 8, v{CH}
    s_lshl_b32 s25, s29, 1
    v_mov_b32 v{NC}, s62
    v_mov_b32 v{NC+1}, s63
    """)
    tr_addr(a, WA3, 2, 0, 2, "s25")
    a(f"v_add_u32 v{CW3}, {WB}, v{WA3}\nv_add_u32 v{CW3+1}, {WB}, v{WA3+1}\nv_add_u32 v{CW3+2}, {WB + 65536}, v{WA3}\nv_add_u32 v{CW3+3}, {WB + 65536}, v{WA3+1}")
    for r in range(16, 48, 2): a(f"v_pk_mov_b32 {vr(AO+r,2)}, 0, 0")
    flag_set(a, "s36", NC)
    tick(a)
    a(f"""
    s_lshl_b32 s24, s33, 6
    s_add_u32 s24, s24, {GATE}
    v_lshlrev_b32 v7, 2, v2
    buffer_load_dword v{GV}, v7, s[12:15], s24 offen {LDF}
    buffer_load_dword v{GV+2}, v7, s[12:15], s24 offen offset:64 {LDF}
    s_lshl_b32 s38, s3, 2
    s_add_u32 s38, s38, s20
    s_lshl_b32 s39, s38, 3
    s_add_u32 s39, s39, {FLG + 0x4000}
    s_lshl_b32 s38, s38, 12
    s_add_u32 s38, s38, {AB}
    s_cmp_eq_u32 s27, 0
    s_cbranch_scc1 f_oskip
    s_barrier
    """)
    OS = [72, 120]; AN = 168
    def o_reads(k):
        F = OS[k & 1]; out = []
        wl = WOL[k >> 1] + (k & 1) * 8192 - WB
        cw = CW3 + 2*(wl >> 16); wl &= 0xffff
        for e in range(2):
            for d in range(2):
                for h in range(2): out.append(f"ds_read_b64_tr_b16 {vr(F+32+(e*2+d)*4+2*h,2)}, v{cw+d} offset:{wl + e*4096 + h*2048}")
            for u in range(2):
                for hh in range(2):
                    out.append(f"ds_read_b128 {vr(F+((u*2+e)*2+hh)*4,4)}, v{CH} offset:{(k&3)*16384 + u*8192 + (e*2+hh)*1024}")
        return out
    def o_mf(k):
        F = OS[k & 1]; out = []
        for e in range(2):
            for u in range(2):
                for t in range(2):
                    for d in range(2):
                        dd = vr((AN if u else AO)+(t*2+d)*4, 4)
                        out.append(f"v_mfma_f32_16x16x32_bf16 {dd}, {vr(F+32+(e*2+d)*4,4)}, {vr(F+((u*2+e)*2+t)*4,4)}, {'0' if (k == 0 and e == 0) else dd}")
        return out
    tick(a)
    seq = list(o_reads(0))
    for k in range(8):
        fill = o_reads(k + 1) if k < 7 else []
        oregs = set(f"v{r}" for r in range(OS[k&1], OS[k&1]+48))
        def swp(kk, e, u):
            b = OS[kk & 1] + (u*2+e)*8
            return [f"v_swap_b32 v{b+2}, v{b+4}", f"v_swap_b32 v{b+3}, v{b+5}"]
        if k == 0: seq += swp(0, 0, 0)
        for j, m in enumerate(o_mf(k)):
            if j == OBAR: seq.append(("BARW", oregs))
            seq.append(m)
            if j == 1: seq += swp(k, 0, 1)
            if j == 5: seq += swp(k, 1, 0)
            if j == 9: seq += swp(k, 1, 1)
            if j == 14 and k < 7: seq += swp(k + 1, 0, 0)
            for _ in range(2 if j % 3 == 1 else 1):
                if fill and j >= OBAR: seq.append(fill.pop(0))
        seq += fill
    for x in add_waits(seq, ["s_barrier"], check=False, iters=1): a(x)
    for q in range(4): a(f"buffer_store_dwordx4 {vr(AN+4*q,4)}, v4, s[12:15], s38 offen offset:{q*1024} {STF}")
    flag_set(a, "s39", NC)
    a.label("f_oskip")
    tick(a)
    HS = [72, 100]; WS = [128 + 28*j for j in range(NWS)]
    def h_reads(k):
        return [f"ds_read_b128 {vr(HS[k&1]+4*j,4)}, v{CH} offset:{(k&3)*16384 + j*1024}" for j in (0, 3, 1, 4, 2, 5, 6)]
    def w_reads(j):
        W = WS[j % NWS]; off = XL[j] & 0xffff; cw = [WA3, CW3, CW3 + 2][XL[j] >> 16]
        out = []
        for m in range(3):
            for d in range(2):
                for h in range(2): out.append(f"ds_read_b64_tr_b16 {vr(W+(d*3+m)*4+2*h,2)}, v{cw+d} offset:{off + m*4096 + h*2048}")
        for d in range(2): out.append(f"ds_read_b64_tr_b16 {vr(W+24+2*d,2)}, v{cw+d} offset:{off + 3*4096}")
        return out
    def h_mf(k):
        H = HS[k&1]; W = WS[k % NWS]; out = []
        for m in range(3):
            for t in range(2):
                for d in range(2):
                    dd = vr(AH+(t*2+d)*4, 4)
                    out.append(f"v_mfma_f32_16x16x32_bf16 {dd}, {vr(W+(d*3+m)*4,4)}, {vr(H+(t*3+m)*4,4)}, {dd}")
        for t in range(2):
            for d in range(2):
                dd = vr(AH6+(t*2+d)*4, 4)
                out.append(f"v_mfma_f32_16x16x16_bf16 {dd}, {vr(W+24+2*d,2)}, {vr(H+24+2*t,2)}, {dd}")
        return out
    a(f"""
    s_mul_i32 s24, s28, 7168
    v_add_u32 v{CH}, s24, v4
    s_barrier
    """)
    for j in range(NWS):
        for x in w_reads(j): a(x)
    a("s_waitcnt lgkmcnt(0)\ns_barrier")
    tick(a)
    a("s_barrier")
    tick(a)
    a("s_cmp_eq_u32 s27, 0\ns_cbranch_scc0 f_noa")
    for q in range(4): a(f"buffer_load_dwordx4 {vr(AO+4*q,4)}, v4, s[12:15], s38 offen offset:{q*1024} {LDF}")
    a.label("f_noa")
    seq = list(h_reads(0))
    pend = []
    for k in range(8):
        if 1 <= k and k + NWS - 1 <= 7: pend += w_reads(k + NWS - 1)
        fill = h_reads(k + 1) if k < 7 else []
        hregs = set(f"v{r}" for r in range(HS[k&1], HS[k&1]+28))
        for j, m in enumerate(h_mf(k)):
            if j == HBAR and k < 7: seq.append(("BARW", hregs))
            seq.append(m)
            if j >= HBAR and fill: seq.append(fill.pop(0))
            elif pend: seq.append(pend.pop(0))
        need = set(f"v{r}" for r in range(WS[(k+1) % NWS], WS[(k+1) % NWS]+28))
        while any(Ins("    " + x).w & need for x in pend): seq.append(pend.pop(0))
    for x in add_waits(seq, ["s_barrier"], check=False, iters=1): a(x)
    tick(a)
    a(f"""
    s_lshr_b32 s24, s33, 1
    s_lshl_b32 s24, s24, 15
    s_lshl_b32 s25, s45, 7
    s_add_u32 s24, s24, s25
    s_lshl_b32 s25, s29, 6
    s_add_u32 s24, s24, s25
    v_lshlrev_b32 v7, 11, v2
    v_and_b32 v8, 1, v3
    v_lshl_add_u32 v7, v8, 5, v7
    v_lshrrev_b32 v8, 1, v3
    v_lshl_add_u32 v7, v8, 4, v7
    s_waitcnt vmcnt(0)
    """)
    for q in range(8): a(f"v_pk_add_f32 {vr(AH+2*q,2)}, {vr(AH+2*q,2)}, {vr(AH6+2*q,2)}")
    for q in range(8): a(f"v_pk_add_f32 {vr(AO+2*q,2)}, {vr(AO+2*q,2)}, {vr(AH+2*q,2)} neg_lo:[0,1] neg_hi:[0,1]")
    for q in range(8): a(f"v_pk_fma_f32 {vr(AO+2*q,2)}, {vr(AO+2*q,2)}, {vr(GV+2*(q>>2),2)}, {vr(AH+2*q,2)} op_sel_hi:[1,0,1]")
    for q in range(8): a(f"v_cvt_pk_bf16_f32 v{OX+q}, v{AO+2*q}, v{AO+2*q+1}")
    for t in range(2):
        a(f"v_permlane16_swap_b32 v{OX+t*4}, v{OX+t*4+2}\nv_permlane16_swap_b32 v{OX+t*4+1}, v{OX+t*4+3}")
        a(f"buffer_store_dwordx4 {vr(OX+t*4,4)}, v7, s[4:7], s24 offen offset:{t*1024}")
    tick_end(a)
    a("s_endpgm")
    a.label("fk_end")
    a("s_endpgm")

def STAMP_GROUPS(wg):
    mlp = (((wg >> 3) if MAP else wg) & 1) == 0
    return [("mlp", 0, mlp, slice(0,4)), ("mload", 0, mlp, slice(4,8)), ("attn", 0, ~mlp, slice(0,4)), ("aload", 0, ~mlp, slice(4,8))]

HEADER = open("gated_mix__sliding_local_dilated__mixer_gmlp__prompt.s.ref").read().split("; Override launch")[0]

import os
for _k, _v in os.environ.items():
    if _k.startswith("G_"): globals()[_k[2:]] = eval(_v)
def gen1(stamps=False):
    global STAMPS
    STAMPS = stamps
    a = Asm()
    for l in HEADER.strip().split("\n"): a.raw(l)
    a.raw(f"; @launch grid=(256,1,1) block=(512,1,1) lds={LDS_BYTES}")
    a.raw('.amdgcn_target "amdgcn-amd-amdhsa--gfx950"')
    gen_fused(a)
    a.raw(kernel_desc(KNAME, 256))
    return a.text()

def gen(stamps=False):
    global CODE_BYTES
    import subprocess, re
    t = gen1(stamps)
    open("_g.s", "w").write(t)
    subprocess.run(["clang", "-x", "assembler", "-target", "amdgcn-amd-amdhsa", "-mcpu=gfx950", "-c", "_g.s", "-o", "_g.o"], check=True)
    h = subprocess.run(["llvm-objdump", "-h", "_g.o"], capture_output=True, text=True).stdout
    CODE_BYTES = int(re.search(r"\.text\s+([0-9a-f]+)", h).group(1), 16) - 4
    return gen1(stamps)

if __name__ == "__main__":
    out = sys.argv[1] if len(sys.argv) > 1 else "gated_mix__sliding_local_dilated__mixer_gmlp__prompt.s"
    open(out, "w").write(gen("--stamps" in sys.argv))
    print("code bytes", hex(CODE_BYTES))
```
